```python
import torch

def _softmax(x, axis=-1):
    return torch.softmax(x, dim=axis)
def _gelu(x):
    return torch.nn.functional.gelu(x, approximate="tanh")
def _silu(x):
    return torch.nn.functional.silu(x)
def _sigmoid(x):
    return torch.sigmoid(x)
def _layernorm(x, axis=-1, eps=1e-5):
    m = x.mean(dim=axis, keepdim=True)
    v = x.var(dim=axis, keepdim=True, unbiased=False)
    return (x - m) / torch.sqrt(v + eps)
def _scatter_add(tgt, idx, src, axis=0):
    return tgt.clone().index_add_(axis, idx, src)
def _segment_sum(src, seg, n):
    out = torch.zeros((n,) + src.shape[1:], dtype=src.dtype)
    return out.index_add_(0, seg, src)
def _pad(x, pw):
    flat = tuple(v for pair in reversed(pw) for v in pair)
    return torch.nn.functional.pad(x, flat)

kernel_name = 'standalone__geglu_ffn__decode'

def setup_inputs():

    _w = (lambda a: (lambda t: t.to(torch.bfloat16) if t.is_floating_point() else t)(torch.as_tensor(a)))
    B, S, D, F = 1, 1, 1024, 3584
    return {
        "x": _w((lambda *s: torch.randn(*s, dtype=torch.bfloat16) * 0.05)(B, S, D)),
        "w_gate": _w((lambda *s: torch.randn(*s, dtype=torch.bfloat16) * 0.05)(D, F)),
        "w_up": _w((lambda *s: torch.randn(*s, dtype=torch.bfloat16) * 0.05)(D, F)),
        "w_down": _w((lambda *s: torch.randn(*s, dtype=torch.bfloat16) * 0.05)(F, D)),
    }

def reference(x, w_gate, w_up, w_down):
    return (_gelu(x @ w_gate) * (x @ w_up)) @ w_down
```

```python
import struct, math

HEADER = """; Kernarg layout for this problem (56 bytes, ptrs only, base s[0:1]):
"""

def f32hex(x):
    return "0x%08x" % struct.unpack("<I", struct.pack("<f", x))[0]

GELU_A = -2.0 * math.log2(math.e) * math.sqrt(2.0 / math.pi)
GELU_B = GELU_A * 0.044715

def kdesc(name, vgpr, sgpr):
    acc = (vgpr + 3) // 4 * 4
    return f"""
.amdhsa_kernel {name}
  .amdhsa_next_free_vgpr {vgpr}
  .amdhsa_next_free_sgpr {sgpr}
  .amdhsa_accum_offset {acc}
  .amdhsa_group_segment_fixed_size 0
  .amdhsa_kernarg_size 56
  .amdhsa_user_sgpr_count 2
  .amdhsa_user_sgpr_kernarg_segment_ptr 1
  .amdhsa_system_sgpr_workgroup_id_x 1
  .amdhsa_float_denorm_mode_32 3
.end_amdhsa_kernel
"""

def kstart(name):
    return f""".globl {name}
.p2align 8
.type {name},@function
{name}:
"""
```

```python
from common import *
import sys
o = []
A = o.append
N1 = "standalone__geglu_ffn__decode_kernel"
N2 = "geglu_reduce_kernel"
A(HEADER.rstrip())
A(f"; @launch kernel={N1} grid=(224,1,1) block=(256,1,1) lds=1024")
A(f"; @launch kernel={N2} grid=(64,1,1) block=(256,1,1) lds=1024")
A('.amdgcn_target "amdgcn-amd-amdhsa--gfx950"')
A(".text")
A(kstart(N1))
A("""
    s_cmp_ge_u32 s2, 224
    s_cbranch_scc1 L_end1
    s_load_dwordx8 s[4:11], s[0:1], 0
    s_load_dwordx2 s[12:13], s[0:1], 48
    ; cs = ((b>>5)<<5) + ((b&7)<<2) + ((b>>3)&3)
    s_and_b32 s14, s2, 0xe0
    s_and_b32 s15, s2, 7
    s_lshl_b32 s15, s15, 2
    s_add_u32 s14, s14, s15
    s_bfe_u32 s15, s2, 0x20003
    s_add_u32 s14, s14, s15          ; s14 = cs
    v_lshrrev_b32 v1, 1, v0          ; rg
    v_and_b32 v2, 1, v0              ; half
    v_lshlrev_b32 v3, 4, v1
    s_mov_b32 s16, 57344
    v_mul_lo_u32 v4, v1, s16         ; rg*8*7168
    v_lshl_add_u32 v4, v2, 4, v4
    s_lshl_b32 s15, s14, 5
    v_add_u32 v4, s15, v4
""")
for i in range(1, 8):
    A(f"    v_add_u32 v{4+i}, {7168*i}, v4")
A("""
    v_and_b32 v12, 31, v0
    v_lshlrev_b32 v12, 4, v12        ; (l&31)*16
    v_lshrrev_b32 v13, 6, v0         ; w
    v_lshl_add_u32 v12, v13, 9, v12  ; + w*512
    v_bfe_u32 v13, v0, 5, 1
    v_lshl_add_u32 v12, v13, 11, v12 ; + (l>>5)*2048
    s_lshl_b32 s15, s14, 15          ; cs*32768
    v_add_u32 v12, s15, v12
""")
for i in range(1, 8):
    A(f"    v_add_u32 v{12+i}, {4096*i}, v12")
A("    s_waitcnt lgkmcnt(0)")
A("    global_load_dwordx4 v[20:23], v3, s[4:5]")
for i in range(8):
    A(f"    global_load_dwordx4 v[{32+4*i}:{35+4*i}], v{4+i}, s[6:7]")
    A(f"    global_load_dwordx4 v[{64+4*i}:{67+4*i}], v{4+i}, s[8:9]")
for i in range(8):
    A(f"    global_load_dwordx4 v[{96+4*i}:{99+4*i}], v{12+i}, s[10:11]")
for j in range(16):
    A(f"    v_mov_b32 v{128+j}, 0")
A("    s_waitcnt vmcnt(24)")
for i in range(8):
    d = 20 + (i >> 1)
    if i % 2 == 0:
        A(f"    v_and_b32 v{4+i}, 0xffff, v{d}")
        A(f"    v_lshlrev_b32 v{12+i}, 16, v{d}")
    else:
        A(f"    v_lshrrev_b32 v{4+i}, 16, v{d}")
        A(f"    v_and_b32 v{12+i}, 0xffff0000, v{d}")
for i in range(8):
    A(f"    s_waitcnt vmcnt({23-2*i})")
    for j in range(4):
        A(f"    v_dot2c_f32_bf16 v{128+2*j}, v{4+i}, v{32+4*i+j}")
        A(f"    v_dot2c_f32_bf16 v{129+2*j}, v{12+i}, v{32+4*i+j}")
    A(f"    s_waitcnt vmcnt({22-2*i})")
    for j in range(4):
        A(f"    v_dot2c_f32_bf16 v{136+2*j}, v{4+i}, v{64+4*i+j}")
        A(f"    v_dot2c_f32_bf16 v{137+2*j}, v{12+i}, v{64+4*i+j}")
A("    s_nop 2")
for j in range(8):
    A(f"    v_permlane32_swap_b32 v{128+j}, v{136+j}")
A("    s_nop 1")
for j in range(8):
    A(f"    v_add_f32 v{128+j}, v{128+j}, v{136+j}")
A("    s_nop 1")
for j in range(4):
    A(f"    v_permlane16_swap_b32 v{128+j}, v{132+j}")
A("    s_nop 1")
for j in range(4):
    A(f"    v_add_f32 v{128+j}, v{128+j}, v{132+j}")
A("    s_nop 1")
for j in range(2):
    A(f"    v_add_f32_dpp v{136+j}, v{128+j}, v{128+j} row_ror:8 row_mask:0xf bank_mask:0x3")
    A(f"    v_add_f32_dpp v{136+j}, v{130+j}, v{130+j} row_ror:8 row_mask:0xf bank_mask:0xc")
A("    s_nop 1")
A("    v_add_f32_dpp v128, v136, v136 row_shl:4 row_mask:0xf bank_mask:0x5")
A("    v_add_f32_dpp v128, v137, v137 row_shr:4 row_mask:0xf bank_mask:0xa")
A("    s_nop 1")
A("    v_add_f32_dpp v128, v128, v128 quad_perm:[2,3,0,1] row_mask:0xf bank_mask:0xf")
A("""
    v_and_b32 v1, 1, v0
    v_bfe_u32 v2, v0, 2, 3
    v_lshl_add_u32 v1, v1, 3, v2     ; col
    v_lshlrev_b32 v1, 5, v1
    v_bfe_u32 v2, v0, 5, 1
    v_lshl_add_u32 v1, v2, 4, v1
    v_lshrrev_b32 v2, 6, v0
    v_lshl_add_u32 v1, v2, 2, v1
    ds_write_b32 v1, v128
    v_and_b32 v1, 7, v0
    v_bfe_u32 v2, v0, 5, 1
    v_lshl_add_u32 v1, v1, 1, v2
    v_lshlrev_b32 v1, 5, v1
    s_waitcnt lgkmcnt(0)
    s_barrier
    ds_read_b128 v[4:7], v1
    ds_read_b128 v[8:11], v1 offset:16
    s_waitcnt lgkmcnt(0)
    v_add_f32 v4, v4, v5
    v_add_f32 v6, v6, v7
    v_add_f32 v8, v8, v9
    v_add_f32 v10, v10, v11
    v_add_f32 v4, v4, v6             ; g
    v_add_f32 v8, v8, v10            ; u
    v_cvt_pk_bf16_f32 v4, v4, v8
    v_lshlrev_b32 v5, 16, v4
    v_and_b32 v6, 0xffff0000, v4     ; u
    v_mul_f32 v7, v5, v5
""")
A(f"    v_mov_b32 v8, {f32hex(GELU_A)}")
A(f"    v_mov_b32 v9, {f32hex(GELU_B)}")
A("""
    v_fma_f32 v7, v7, v9, v8
    v_mul_f32 v7, v7, v5
    v_exp_f32 v7, v7
    s_nop 0
    v_add_f32 v7, 1.0, v7
    v_rcp_f32 v7, v7
    s_nop 0
    v_mul_f32 v7, v7, v5             ; gelu
    v_cvt_pk_bf16_f32 v7, v7, v7
    v_lshlrev_b32 v7, 16, v7
    v_mul_f32 v7, v7, v6             ; h
    v_cvt_pk_bf16_f32 v7, v7, v7
    v_and_b32 v7, 0xffff, v7
    v_and_b32 v8, 8, v0
    v_lshlrev_b32 v8, 1, v8
    v_lshlrev_b32 v7, v8, v7         ; hreg
""")
for j in range(8):
    A(f"    v_mov_b32 v{128+j}, 0")
for i in range(8):
    A(f"    s_waitcnt vmcnt({7-i})")
    for j in range(4):
        A(f"    v_dot2c_f32_bf16_dpp v{128+2*j}, v7, v{96+4*i+j} row_newbcast:{i} row_mask:0xf bank_mask:0xf")
        A(f"    v_dot2c_f32_bf16_dpp v{129+2*j}, v7, v{96+4*i+j} row_newbcast:{8+i} row_mask:0xf bank_mask:0xf")
A("    s_nop 2")
for j in range(4):
    A(f"    v_permlane32_swap_b32 v{128+j}, v{132+j}")
A("    s_nop 1")
for j in range(4):
    A(f"    v_add_f32 v{128+j}, v{128+j}, v{132+j}")
A("""
    v_and_b32 v1, 31, v0
    v_lshlrev_b32 v1, 5, v1
    v_lshrrev_b32 v2, 6, v0
    v_lshl_add_u32 v1, v2, 10, v1
    v_bfe_u32 v2, v0, 5, 1
    v_lshl_add_u32 v1, v2, 4, v1
    s_lshl_b32 s15, s2, 12
    v_add_u32 v1, s15, v1
    global_store_dwordx4 v1, v[128:131], s[12:13]
L_end1:
    s_endpgm
""")
A(kstart(N2))
A("""
    s_cmp_ge_u32 s2, 64
    s_cbranch_scc1 L_end2
    s_load_dwordx2 s[4:5], s[0:1], 48
    s_load_dwordx2 s[8:9], s[0:1], 32
    s_mov_b32 s6, 917504
    s_mov_b32 s7, 0x20000
    v_and_b32 v1, 3, v0
    v_lshlrev_b32 v1, 4, v1
    v_lshrrev_b32 v2, 2, v0
    v_lshl_add_u32 v1, v2, 12, v1
    s_lshl_b32 s3, s2, 6
    v_add_u32 v1, s3, v1
    s_mov_b32 s10, 262144
    s_mov_b32 s11, 524288
    s_mov_b32 s12, 786432
    s_waitcnt lgkmcnt(0)
    buffer_load_dwordx4 v[4:7], v1, s[4:7], 0 offen
    buffer_load_dwordx4 v[8:11], v1, s[4:7], s10 offen
    buffer_load_dwordx4 v[12:15], v1, s[4:7], s11 offen
    buffer_load_dwordx4 v[16:19], v1, s[4:7], s12 offen
    s_waitcnt vmcnt(0)
""")
for j in range(4):
    A(f"    v_add_f32 v{4+j}, v{4+j}, v{8+j}")
    A(f"    v_add_f32 v{12+j}, v{12+j}, v{16+j}")
for j in range(4):
    A(f"    v_add_f32 v{4+j}, v{4+j}, v{12+j}")
A("""
    s_nop 1
    v_permlane32_swap_b32 v4, v6
    v_permlane32_swap_b32 v5, v7
    s_nop 1
    v_add_f32 v4, v4, v6
    v_add_f32 v5, v5, v7
    s_nop 1
    v_permlane16_swap_b32 v4, v5
    s_nop 1
    v_add_f32 v4, v4, v5
    s_nop 1
    v_add_f32_dpp v4, v4, v4 row_ror:8 row_mask:0xf bank_mask:0xf
    s_nop 1
    v_add_f32_dpp v4, v4, v4 row_ror:4 row_mask:0xf bank_mask:0xf
    v_and_b32 v1, 3, v0
    v_bfe_u32 v2, v0, 5, 1
    v_bfe_u32 v3, v0, 4, 1
    v_lshl_add_u32 v1, v1, 1, v2
    v_lshl_add_u32 v1, v1, 1, v3     ; col 0..15
    v_lshlrev_b32 v1, 4, v1
    v_lshrrev_b32 v2, 6, v0
    v_lshl_add_u32 v1, v2, 2, v1
    ds_write_b32 v1, v4
    s_waitcnt lgkmcnt(0)
    s_barrier
    v_cmp_gt_u32 vcc, 8, v0
    s_and_saveexec_b64 s[14:15], vcc
    s_cbranch_execz L_end2
    v_lshlrev_b32 v1, 5, v0
    ds_read_b128 v[4:7], v1
    ds_read_b128 v[8:11], v1 offset:16
    s_waitcnt lgkmcnt(0)
    v_add_f32 v4, v4, v5
    v_add_f32 v6, v6, v7
    v_add_f32 v8, v8, v9
    v_add_f32 v10, v10, v11
    v_add_f32 v4, v4, v6
    v_add_f32 v8, v8, v10
    v_cvt_pk_bf16_f32 v4, v4, v8
    v_lshlrev_b32 v1, 2, v0
    s_lshl_b32 s3, s2, 5
    v_add_u32 v1, s3, v1
    global_store_dword v1, v4, s[8:9]
L_end2:
    s_endpgm
""")
A('.section .rodata,"a"')
A(".p2align 6")
A(kdesc(N1, 144, 24))
A(".p2align 6")
A(kdesc(N2, 24, 24))
open(sys.argv[1], "w").write("\n".join(o))
```

```python
import sys,re
def stampify(text, enable=True, base=60):
    out=[]
    for line in text.split("\n"):
        m=re.match(r"\s*; STAMP (\d+)\s*$", line)
        if m:
            if enable:
                n=int(m.group(1)); out.append(f"    s_memrealtime s[{base+2*n}:{base+2*n+1}]")
            continue
        m=re.match(r"\s*; STAMPS_OUT (\d+) (\d+) (\d+)\s*$", line)
        if m:
            if enable:
                n=int(m.group(1)); ws=int(m.group(2)); wpb=int(m.group(3))
                out.append("    s_mov_b64 exec, 1")
                out.append("    s_sleep 127")
                out.append("    s_sleep 127")
                out.append("    s_waitcnt lgkmcnt(0)")
                out.append("    v_lshrrev_b32 v250, 6, v255")
                out.append("    s_lshl_b32 s58, s2, 4")
                out.append("    v_add_u32 v250, s58, v250")
                out.append(f"    v_mul_u32_u24 v250, {n*8}, v250")
                out.append("    v_add_u32 v250, 0x8000000, v250")
                for i in range(n):
                    out.append(f"    v_mov_b32 v252, s{base+2*i}")
                    out.append(f"    v_mov_b32 v253, s{base+2*i+1}")
                    out.append(f"    global_store_dwordx2 v250, v[252:253], s[{ws}:{ws+1}] offset:{8*i}")
                    out.append("    s_nop 1")
            continue
        m=re.match(r"\s*; STAMPS_INIT (\d+)\s*$", line)
        if m:
            if enable:
                n=int(m.group(1))
                out.append("    v_mov_b32 v255, v0")
                for i in range(1,n):
                    out.append(f"    s_mov_b64 s[{base+2*i}:{base+2*i+1}], 0")
            continue
        out.append(line)
    t="\n".join(out)
    if enable:
        t=re.sub(r"\.amdhsa_next_free_vgpr \d+", ".amdhsa_next_free_vgpr 256", t)
        t=re.sub(r"\.amdhsa_accum_offset \d+", ".amdhsa_accum_offset 256", t)
        t=re.sub(r"\.amdhsa_next_free_sgpr \d+", ".amdhsa_next_free_sgpr 96", t)
    return t
if __name__=="__main__":
    t=open(sys.argv[1]).read()
    open(sys.argv[2],"w").write(stampify(t, True))
```

```python
from common import *
from stampify import stampify
import sys

HOP1 = 0x10000
HOP2 = 0x80000
EPOCH = 0x0

def gen(stamps=False, nt="nt", barrier_between=True, st1="sc1", ld1="sc1", st2="sc1", ld2="sc1", outflag=""):
    o=[]; A=o.append
    N1="standalone__geglu_ffn__decode_kernel"
    A(HEADER.rstrip())
    A(f"; @launch grid=(224,1,1) block=(256,1,1) lds=4096")
    A('.amdgcn_target "amdgcn-amd-amdhsa--gfx950"')
    A(".text"); A(kstart(N1))
    GA=8
    DA=24
    XV=32
    XL=40
    XH=56
    GD=72
    DD=136
    AC=168
    A(f"""
    ; STAMP 0
    s_cmp_ge_u32 s2, 224
    s_cbranch_scc1 L_exit
    s_load_dwordx8 s[4:11], s[0:1], 0
    s_load_dwordx4 s[12:15], s[0:1], 32
    s_load_dwordx2 s[16:17], s[0:1], 48
    s_mov_b32 s44, 0x40000
    s_lshr_b32 s18, s2, 3            ; r
    s_and_b32 s19, s2, 7             ; j
    v_and_b32 v1, 15, v0             ; c
    v_lshrrev_b32 v2, 4, v0          ; w*4+q  (0..15)
    s_lshr_b32 s26, s19, 1           ; kc
    s_lshl_b32 s27, s26, 9
    v_lshl_add_u32 v3, v2, 5, s27
    s_mul_i32 s27, s26, {256*7168}
    s_lshl_b32 s28, s18, 8
    s_add_u32 s27, s27, s28          ; + 256*r
    v_mul_u32_u24 v4, {16*7168}, v2
    v_lshl_add_u32 v4, v1, 4, v4
    v_add_u32 v{GA}, s27, v4
""")
    for t in range(1,16):
        A(f"    v_add_u32 v{GA+t}, {7168*t}, v{GA}")
    A(f"""
    v_lshrrev_b32 v4, 6, v0          ; w
    v_bfe_u32 v5, v0, 4, 1           ; q&1
    v_bfe_u32 v6, v0, 5, 1           ; q>>1
    v_lshl_add_u32 v4, v4, 1, v5     ; 2w + (q&1)
    v_lshl_add_u32 v4, v4, 4, v6     ; 32w + 16(q&1) + (q>>1)
    v_lshlrev_b32 v4, 11, v4
    v_lshl_add_u32 v4, v1, 4, v4
    s_lshl_b32 s27, s18, 18          ; 128r*2048
    s_lshl_b32 s28, s19, 8
    s_add_u32 s27, s27, s28
    v_add_u32 v{DA}, s27, v4
""")
    for t in range(1,8):
        A(f"    v_add_u32 v{DA+t}, {4096*t}, v{DA}")
    for i in range(8):
        A(f"    v_mov_b32 v{AC+i}, 0")
    A(f"""
    s_bitcmp1_b32 s19, 0
    s_waitcnt lgkmcnt(0)
    ; STAMP 1
    s_cselect_b64 s[20:21], s[8:9], s[6:7]
    global_load_dwordx4 v[{XV}:{XV+3}], v3, s[4:5]
    global_load_dwordx4 v[{XV+4}:{XV+7}], v3, s[4:5] offset:16
""")
    for t in range(16):
        A(f"    global_load_dwordx4 v[{GD+4*t}:{GD+4*t+3}], v{GA+t}, s[20:21] {nt}")
    A(f"    s_load_dwordx2 s[22:23], s[16:17], {EPOCH}")
    if barrier_between:
        A("    s_barrier")
    for t in range(8):
        A(f"    global_load_dwordx4 v[{DD+4*t}:{DD+4*t+3}], v{DA+t}, s[10:11] {nt}")
    A("    ; STAMP 2")
    A("    s_waitcnt vmcnt(24)")
    for t in range(16):
        d = XV + (t>>1)
        if t%2==0:
            A(f"    v_and_b32 v{XL+t}, 0xffff, v{d}")
            A(f"    v_lshlrev_b32 v{XH+t}, 16, v{d}")
        else:
            A(f"    v_lshrrev_b32 v{XL+t}, 16, v{d}")
            A(f"    v_and_b32 v{XH+t}, 0xffff0000, v{d}")
    A(f"""
    v_lshrrev_b32 v8, 6, v0          ; w
    v_bfe_u32 v9, v0, 4, 2           ; q
    v_lshlrev_b32 v10, 9, v8         ; w*512
    v_lshl_add_u32 v10, v1, 5, v10   ; + c*32
    v_lshl_add_u32 v10, v9, 3, v10
    v_and_b32 v11, 63, v0
    v_lshlrev_b32 v11, 3, v11
    s_lshl_b32 s27, s2, 10
    s_add_u32 s27, s27, {HOP1}
    v_lshl_add_u32 v12, v11, 1, s27
    s_lshl_b32 s27, s18, 13
    s_add_u32 s27, s27, {HOP1}
    v_lshlrev_b32 v13, 11, v9
    v_lshl_add_u32 v13, v8, 8, v13
    v_lshl_add_u32 v13, v1, 4, v13
    v_add_u32 v13, s27, v13
    s_mul_i32 s27, s19, 28
    s_add_u32 s28, s27, s18
    s_lshl_b32 s28, s28, 10
    s_add_u32 s28, s28, {HOP2}
    v_lshl_add_u32 v14, v11, 1, s28
    s_lshl_b32 s27, s27, 10
    s_lshl_b32 s28, s18, 7
    s_add_u32 s27, s27, s28
    s_add_u32 s27, s27, {HOP2}
    v_bfe_u32 v15, v0, 3, 3          ; pr
    v_lshlrev_b32 v15, 12, v15
    v_and_b32 v16, 7, v0
    v_lshl_add_u32 v15, v16, 4, v15
    v_add_u32 v15, s27, v15
""")
    for t in range(16):
        A(f"    s_waitcnt vmcnt({23-t})")
        for k in range(4):
            A(f"    v_dot2c_f32_bf16 v{AC+2*k}, v{XL+t}, v{GD+4*t+k}")
            A(f"    v_dot2c_f32_bf16 v{AC+2*k+1}, v{XH+t}, v{GD+4*t+k}")
    A("    ; STAMP 3")
    def reduce8():
        A("    s_nop 2")
        for i in range(4): A(f"    v_permlane32_swap_b32 v{AC+i}, v{AC+4+i}")
        A("    s_nop 0")
        for i in range(4): A(f"    v_add_f32 v{AC+i}, v{AC+i}, v{AC+4+i}")
        A("    s_nop 0")
        for i in range(2): A(f"    v_permlane16_swap_b32 v{AC+i}, v{AC+2+i}")
        A("    s_nop 0")
        for i in range(2): A(f"    v_add_f32 v{AC+i}, v{AC+i}, v{AC+2+i}")
    reduce8()
    A(f"""
    ds_write_b64 v10, v[{AC}:{AC+1}]
    s_waitcnt lgkmcnt(0)
    s_add_u32 s24, s22, 1
    s_add_u32 s25, s23, 0x9e3779b9
    s_barrier
    v_readfirstlane_b32 s29, v8
    s_cmp_lg_u32 s29, 0
    s_cbranch_scc1 L_poll1
    ds_read_b64 v[40:41], v11
    ds_read_b64 v[42:43], v11 offset:512
    ds_read_b64 v[44:45], v11 offset:1024
    ds_read_b64 v[46:47], v11 offset:1536
    v_mov_b32 v49, s24
    v_mov_b32 v51, s25
    s_waitcnt lgkmcnt(0)
    v_add_f32 v40, v40, v42
    v_add_f32 v41, v41, v43
    v_add_f32 v44, v44, v46
    v_add_f32 v45, v45, v47
    v_add_f32 v48, v40, v44
    v_add_f32 v50, v41, v45
    global_store_dwordx4 v12, v[48:51], s[16:17] {st1}
    ; STAMP 4
L_poll1:
    global_load_dwordx4 v[40:43], v13, s[16:17] {ld1}
    global_load_dwordx4 v[44:47], v13, s[16:17] offset:1024 {ld1}
    s_waitcnt vmcnt(0)
    v_cmp_eq_u32 vcc, s24, v41
    v_cmp_eq_u32 s[30:31], s25, v43
    v_cmp_eq_u32 s[32:33], s24, v45
    v_cmp_eq_u32 s[34:35], s25, v47
    s_and_b64 vcc, vcc, s[30:31]
    s_and_b64 s[32:33], s[32:33], s[34:35]
    s_and_b64 vcc, vcc, s[32:33]
    s_cmp_eq_u64 vcc, -1
    s_cbranch_scc1 L_done1
    s_sub_u32 s44, s44, 1
    s_cbranch_scc0 L_poll1
L_done1:
    ; STAMP 5
    ; g0=v40 g1=v42 u0=v44 u1=v46
    v_permlane32_swap_b32 v40, v42
    v_permlane32_swap_b32 v44, v46
    s_nop 0
    v_add_f32 v40, v40, v42          ; G
    v_add_f32 v44, v44, v46          ; U
    s_nop 1
    v_permlane16_swap_b32 v40, v44
    s_nop 0
    v_add_f32 v40, v40, v44          ; S
    v_mov_b32 v44, v40
    s_nop 1
    v_permlane16_swap_b32 v40, v44   ; v40 = g, v44 = u
    s_nop 0
    v_cvt_pk_bf16_f32 v4, v40, v44
    v_lshlrev_b32 v5, 16, v4         ; g
    v_and_b32 v6, 0xffff0000, v4     ; u
    v_mul_f32 v7, v5, v5
    v_mov_b32 v17, {f32hex(GELU_A)}
    v_fmac_f32 v17, {f32hex(GELU_B)}, v7
    v_mul_f32 v7, v17, v5
    v_exp_f32 v7, v7
    s_nop 0
    v_add_f32 v7, 1.0, v7
    v_rcp_f32 v7, v7
    s_nop 0
    v_mul_f32 v7, v7, v5             ; gelu
    v_cvt_pk_bf16_f32 v7, v7, v7
    v_lshlrev_b32 v7, 16, v7
    v_mul_f32 v7, v7, v6             ; h
    v_cvt_pk_bf16_f32 v7, v7, v7
    s_nop 1
    v_mov_b32_dpp v7, v7 row_ror:8 row_mask:0xa bank_mask:0xf
    v_and_b32 v5, 0xffff, v7
    v_and_b32 v6, 0xffff0000, v7
""")
    for i in range(8):
        A(f"    v_mov_b32 v{AC+i}, 0")
    for t in range(8):
        for k in range(4):
            A(f"    v_dot2c_f32_bf16_dpp v{AC+2*k}, v5, v{DD+4*t+k} row_newbcast:{t} row_mask:0xf bank_mask:0xf")
            A(f"    v_dot2c_f32_bf16_dpp v{AC+2*k+1}, v6, v{DD+4*t+k} row_newbcast:{t} row_mask:0xf bank_mask:0xf")
    reduce8()
    A(f"""
    ds_write_b64 v10, v[{AC}:{AC+1}] offset:2048
    s_waitcnt lgkmcnt(0)
    s_barrier
    ; STAMP 6
    s_cmp_lg_u32 s29, 0
    s_cbranch_scc1 L_cons
    ds_read_b64 v[40:41], v11 offset:2048
    ds_read_b64 v[42:43], v11 offset:2560
    ds_read_b64 v[44:45], v11 offset:3072
    ds_read_b64 v[46:47], v11 offset:3584
    s_waitcnt lgkmcnt(0)
    v_add_f32 v40, v40, v42
    v_add_f32 v41, v41, v43
    v_add_f32 v44, v44, v46
    v_add_f32 v45, v45, v47
    v_add_f32 v48, v40, v44
    v_add_f32 v50, v41, v45
    global_store_dwordx4 v14, v[48:51], s[16:17] {st2}
    ; STAMP 7
    s_branch L_end
L_cons:
    s_cmp_lg_u32 s29, 1
    s_cbranch_scc1 L_end
    s_cmp_ge_u32 s18, 8
    s_cbranch_scc1 L_end
    v_mov_b32 v56, 0
    v_mov_b32 v57, 0
    s_mov_b32 exec_hi, 0x00ffffff
L_poll2:
    global_load_dwordx4 v[40:43], v15, s[16:17] {ld2}
    global_load_dwordx4 v[44:47], v15, s[16:17] offset:1024 {ld2}
    global_load_dwordx4 v[48:51], v15, s[16:17] offset:2048 {ld2}
    global_load_dwordx4 v[52:55], v15, s[16:17] offset:3072 {ld2}
    s_waitcnt vmcnt(0)
    v_cmp_eq_u32 vcc, s24, v41
    v_cmp_eq_u32 s[30:31], s25, v43
    v_cmp_eq_u32 s[32:33], s24, v45
    v_cmp_eq_u32 s[34:35], s25, v47
    v_cmp_eq_u32 s[36:37], s24, v49
    v_cmp_eq_u32 s[38:39], s25, v51
    v_cmp_eq_u32 s[40:41], s24, v53
    v_cmp_eq_u32 s[42:43], s25, v55
    s_and_b64 vcc, vcc, s[30:31]
    s_and_b64 s[32:33], s[32:33], s[34:35]
    s_and_b64 s[36:37], s[36:37], s[38:39]
    s_and_b64 s[40:41], s[40:41], s[42:43]
    s_and_b64 vcc, vcc, s[32:33]
    s_and_b64 s[36:37], s[36:37], s[40:41]
    s_and_b64 vcc, vcc, s[36:37]
    s_cmp_eq_u64 vcc, exec
    s_cbranch_scc1 L_done2
    s_sub_u32 s44, s44, 1
    s_cbranch_scc0 L_poll2
L_done2:
    ; STAMP 8
    v_add_f32 v40, v40, v44
    v_add_f32 v42, v42, v46
    v_add_f32 v48, v48, v52
    v_add_f32 v50, v50, v54
    v_add_f32 v56, v40, v48
    v_add_f32 v57, v42, v50
    s_mov_b64 exec, -1
    s_nop 1
    v_permlane32_swap_b32 v56, v57
    s_nop 0
    v_add_f32 v56, v56, v57
    s_nop 1
    v_add_f32_dpp v56, v56, v56 row_ror:8 row_mask:0xf bank_mask:0xf
    v_mov_b32 v57, v56
    s_nop 1
    v_permlane16_swap_b32 v56, v57
    s_nop 0
    v_add_f32 v56, v56, v57
    v_mov_b32 v57, v56
    s_nop 1
    v_permlane32_swap_b32 v56, v57
    s_nop 0
    v_cvt_pk_bf16_f32 v56, v56, v57
    s_lshl_b32 s27, s19, 8
    s_lshl_b32 s28, s18, 5
    s_add_u32 s27, s27, s28
    v_lshl_add_u32 v16, v16, 2, s27
    s_mov_b64 exec, 0xff
    global_store_dword v16, v56, s[12:13] {outflag}
    s_cmp_lg_u32 s2, 0
    s_cbranch_scc1 L_end
    v_mov_b32 v40, s24
    v_mov_b32 v41, s25
    v_mov_b32 v42, {EPOCH}
    s_mov_b64 exec, 1
    global_store_dwordx2 v42, v[40:41], s[16:17]
L_end:
    ; STAMP 9
L_exit:
    s_endpgm
""")
    A('.section .rodata,"a"'); A(".p2align 6"); A(kdesc(N1, 176, 48))
    return stampify("\n".join(o), stamps)

if __name__=="__main__":
    out=sys.argv[1]
    kw={}
    for a in sys.argv[2:]:
        k,v=a.split("=")
        kw[k]= (v=="1") if k in("stamps","barrier_between") else v.replace("_"," ")
    open(out,"w").write(gen(**kw))
```

```python
from common import *
from stampify import stampify
import sys

EPOCH = 0x0
HOP2 = 0x1000
HOP1 = 0x40000

def gen(stamps=False, nt="nt", fast=True, prefetch=True, align=12, inner=4, slp=1, outflag="", first_sleep=0, bar=True,
        w1=False, w2=False, w3=False, w4=False, pb=True, st1="sc1", rx=0, hwid=False, dpos=0):
    o=[]; A=o.append
    N1="standalone__geglu_ffn__decode_kernel"
    A(HEADER.rstrip())
    A(f"; @launch grid=(224,1,1) block=(512,1,1) lds=8192")
    A('.amdgcn_target "amdgcn-amd-amdhsa--gfx950"')
    A(".text")
    A(f".globl {N1}\n.p2align {align}\n.type {N1},@function\n{N1}:")
    GA=8
    DA=16
    XV=20
    XL=24
    XH=32
    GD=40
    DD=72
    AC=88
    A2=96
    P=104
    XI=108
    PF=109
    LW,LR,H1S,H1L,H2S,H2L,GI,XIA = 112,113,114,115,116,117,118,119
    WM=120
    A(f"""
    ; STAMP 0
    s_cmp_ge_u32 s2, 224
    s_cbranch_scc1 L_exit
    s_load_dwordx8 s[4:11], s[0:1], 0
    s_load_dwordx4 s[12:15], s[0:1], 32
    s_load_dwordx2 s[16:17], s[0:1], 48
""")
    if prefetch:
        A(f"""
    s_getpc_b64 s[20:21]
    v_lshlrev_b32 v1, 7, v0
    v_cmp_gt_u32 vcc, 0xc00, v1
    s_and_saveexec_b64 s[22:23], vcc
    s_cbranch_execz L_nopf
    global_load_dword v{PF}, v1, s[20:21]
L_nopf:
    s_mov_b64 exec, -1
""")
    addr_hop = f"""
    v_lshrrev_b32 v17, 6, v0          ; w
    v_bfe_u32 v18, v0, 4, 2           ; q
    v_readfirstlane_b32 s29, v17
    v_lshlrev_b32 v{LW}, 9, v17         ; w*512
    v_lshl_add_u32 v{LW}, v1, 5, v{LW}   ; + c*32
    v_lshl_add_u32 v{LW}, v18, 3, v{LW}
    v_and_b32 v{LR}, 63, v0
    v_lshlrev_b32 v{LR}, 3, v{LR}
    s_lshl_b32 s27, s18, 3
    s_add_u32 s27, s27, s19
    s_lshl_b32 s27, s27, 10
    s_add_u32 s27, s27, {HOP1}
    v_lshl_add_u32 v{H1S}, v{LR}, 1, s27
    s_lshl_b32 s27, s18, 13
    s_add_u32 s27, s27, {HOP1}
    v_bfe_u32 v19, v0, 3, 3           ; p
    v_lshl_add_u32 v{H1L}, v19, 10, s27
    v_lshl_add_u32 v{H1L}, v17, 7, v{H1L}  ; + w*128
    v_and_b32 v19, 7, v0
    v_lshl_add_u32 v{H1L}, v19, 4, v{H1L}  ; + gi*16
    s_mul_i32 s27, s19, 28
    s_add_u32 s28, s27, s18
    s_lshl_b32 s28, s28, 10
    s_add_u32 s28, s28, {HOP2}
    v_lshl_add_u32 v{H2S}, v{LR}, 1, s28
    s_lshl_b32 s27, s27, 10
    s_lshl_b32 s28, s18, 7
    s_add_u32 s27, s27, s28
    s_add_u32 s27, s27, {HOP2}
    v_bfe_u32 v{H2L}, v0, 3, 3          ; pr
    v_lshlrev_b32 v{H2L}, 12, v{H2L}
    v_and_b32 v{GI}, 7, v0             ; gi
    v_lshl_add_u32 v{H2L}, v{GI}, 4, v{H2L}
    v_add_u32 v{H2L}, s27, v{H2L}
    s_lshl_b32 s27, s19, 5
    v_lshl_add_u32 v{XIA}, v{GI}, 2, s27
"""
    A(f"""
    s_lshr_b32 s18, s2, 3            ; r
    s_xor_b32 s18, s18, {rx}
    s_and_b32 s19, s2, 7             ; j
    v_and_b32 v1, 15, v0             ; c
    v_lshrrev_b32 v2, 4, v0          ; 4w+q (0..31)
    s_lshr_b32 s26, s19, 1           ; kc
    s_lshl_b32 s27, s26, 9
    v_lshl_add_u32 v3, v2, 4, s27
    s_mul_i32 s27, s26, {256*7168}
    s_lshl_b32 s28, s18, 8
    s_add_u32 s27, s27, s28
    v_mul_u32_u24 v4, {8*7168}, v2
    v_lshl_add_u32 v4, v1, 4, v4
    v_add_u32 v{GA}, s27, v4
""")
    for t in range(1,8):
        A(f"    v_add_u32 v{GA+t}, {7168*t}, v{GA}")
    A(f"""
    s_lshl_b32 s27, s18, 18
    s_lshl_b32 s28, s19, 8
    s_add_u32 s27, s27, s28
    s_add_u32 s27, s27, 4096
    v_lshrrev_b32 v4, 6, v0
    v_bfe_u32 v17, v0, 4, 1
    v_lshl_add_u32 v4, v4, 1, v17
    v_bfe_u32 v17, v0, 5, 1
    v_lshl_add_u32 v4, v4, 3, v17
    v_lshlrev_b32 v4, 11, v4
    v_lshl_add_u32 v4, v1, 4, v4
    v_add_u32 v{DA}, s27, v4
    v_add_u32 v110, 8192, v{DA}
""")
    early = w1 or w2 or w3 or w4
    if early: A(addr_hop)
    A(f"""
    s_getreg_b32 s45, hwreg(HW_REG_XCC_ID, 0, 4)
    s_add_u32 s45, s45, 1
    s_lshl_b32 s27, s19, 5
    s_lshl_b32 s28, s18, 2
    s_add_u32 s27, s27, s28
    v_mov_b32 v5, s27
    v_mov_b32 v6, s45
    v_mov_b32 v{WM}, 0
    v_mov_b32 v{WM+1}, 0
    v_mov_b32 v{WM+2}, 0
    v_mov_b32 v{WM+3}, 0
    s_cmp_lt_u32 s18, 8
    s_cselect_b32 s27, 0x40, -1
    v_cmp_eq_u32 vcc, s27, v0
    s_bitcmp1_b32 s19, 0
    s_waitcnt lgkmcnt(0)
    ; STAMP 1
    s_cselect_b64 s[20:21], s[8:9], s[6:7]
    s_load_dwordx2 s[22:23], s[16:17], {EPOCH}
""")
    if w1: A(f"    global_load_dwordx4 v[{WM+4}:{WM+7}], v{H1L}, s[16:17] sc1")
    if w2 or w4:
        A("    s_cmp_lg_u32 s29, 0")
        A("    s_cbranch_scc1 L_now2")
        if w2: A(f"    global_store_dwordx4 v{H1S}, v[{WM}:{WM+3}], s[16:17] sc1")
        if w4: A(f"    global_store_dwordx4 v{H2S}, v[{WM}:{WM+3}], s[16:17]")
        A("L_now2:")
    A(f"""
    s_cbranch_vccz L_noxi
""")
    if w3:
        A("    s_mov_b32 exec_hi, 0x00ffffff")
        for i in range(4):
            A(f"    global_load_dwordx4 v[{WM+8}:{WM+11}], v{H2L}, s[16:17] offset:{1024*i} sc1")
    A(f"""
    s_mov_b64 exec, 1
    global_store_dword v5, v6, s[14:15] sc1
    s_mov_b64 exec, -1
L_noxi:
    global_load_dwordx4 v[{XV}:{XV+3}], v3, s[4:5]
""")
    for t in range(8):
        A(f"    global_load_dwordx4 v[{GD+4*t}:{GD+4*t+3}], v{GA+t}, s[20:21] {nt}")
    if bar: A("    s_barrier")
    def dloads():
        for t in range(4):
            A(f"    global_load_dwordx4 v[{DD+4*t}:{DD+4*t+3}], v{DA if t<2 else 110}, s[10:11] offset:{((t&1)-1)*4096} {nt}")
    if dpos==0: dloads()
    A("    ; STAMP 2")
    for i in range(8):
        A(f"    v_mov_b32 v{AC+i}, 0")
        A(f"    v_mov_b32 v{A2+i}, 0")
    A("    s_mov_b32 s44, 0x40000")
    if not early: A(addr_hop)
    A(f"""
    s_waitcnt lgkmcnt(0)
    s_add_u32 s24, s22, 2
    s_or_b32 s24, s24, 1
    s_add_u32 s25, s23, 0x9e3779b9
    v_mov_b32 v{P+1}, 0              ; != tagA
    v_mov_b32 v5, s24
    v_mov_b32 v7, s25
    s_waitcnt vmcnt({12 if dpos==0 else 8})
""")
    for t in range(8):
        d = XV + (t>>1)
        if t%2==0:
            A(f"    v_and_b32 v{XL+t}, 0xffff, v{d}")
            A(f"    v_lshlrev_b32 v{XH+t}, 16, v{d}")
        else:
            A(f"    v_lshrrev_b32 v{XL+t}, 16, v{d}")
            A(f"    v_and_b32 v{XH+t}, 0xffff0000, v{d}")
    for t in range(8):
        if dpos and t==dpos: dloads()
        A(f"    s_waitcnt vmcnt({(11 if (dpos==0 or t>=dpos) else 7)-t})")
        for k in range(4):
            A(f"    v_dot2c_f32_bf16 v{AC+2*k}, v{XL+t}, v{GD+4*t+k}")
            A(f"    v_dot2c_f32_bf16 v{AC+2*k+1}, v{XH+t}, v{GD+4*t+k}")
    A("    ; STAMP 3")
    if dpos==8: dloads()
    def reduce8(AC):
        A("    s_nop 2")
        for i in range(4): A(f"    v_permlane32_swap_b32 v{AC+i}, v{AC+4+i}")
        for i in range(4): A(f"    v_add_f32 v{AC+i}, v{AC+i}, v{AC+4+i}")
        A("    s_nop 0")
        for i in range(2): A(f"    v_permlane16_swap_b32 v{AC+i}, v{AC+2+i}")
        A("    s_nop 0")
        for i in range(2): A(f"    v_add_f32 v{AC+i}, v{AC+i}, v{AC+2+i}")
    def ldsreduce(off):
        for i in range(8):
            A(f"    ds_read_b64 v[{40+2*i}:{41+2*i}], v{LR} offset:{off+512*i}")
        A("    s_waitcnt lgkmcnt(4)")
        A("    v_pk_add_f32 v[40:41], v[40:41], v[42:43]")
        A("    v_pk_add_f32 v[44:45], v[44:45], v[46:47]")
        A("    s_waitcnt lgkmcnt(0)")
        A("    v_pk_add_f32 v[48:49], v[48:49], v[50:51]")
        A("    v_pk_add_f32 v[52:53], v[52:53], v[54:55]")
        A("    v_pk_add_f32 v[40:41], v[40:41], v[44:45]")
        A("    v_pk_add_f32 v[48:49], v[48:49], v[52:53]")
        A("    v_add_f32 v4, v40, v48")
        A("    v_add_f32 v6, v41, v49")
    reduce8(AC)
    A(f"""
    ds_write_b64 v{LW}, v[{AC}:{AC+1}]
    s_waitcnt lgkmcnt(0)
    s_barrier
""")
    if dpos==9:
        A("    s_cmp_eq_u32 s29, 0")
        A("    s_cbranch_scc1 L_pub1")
        dloads()
        A("    s_branch L_p1start")
        A("L_pub1:")
    else:
        A("    s_cmp_lg_u32 s29, 0")
        A("    s_cbranch_scc1 L_p1start")
    ldsreduce(0)
    A(f"""
    global_store_dwordx4 v{H1S}, v[4:7], s[16:17] {st1}
    global_load_dword v{XI}, v{XIA}, s[14:15] sc1
    ; STAMP 4
""")
    if dpos==9: dloads()
    A("L_p1start:")
    if pb: A("    s_barrier")
    if first_sleep: A(f"    s_sleep {first_sleep}")
    A(f"""
L_poll1:
    global_load_dwordx4 v[{P}:{P+3}], v{H1L}, s[16:17] sc1
    s_mov_b32 s46, {inner}
L_chk1:
    s_sleep {slp}
    v_cmp_eq_u32 vcc, s24, v{P+1}
    v_cmp_eq_u32 s[30:31], s25, v{P+3}
    s_and_b64 vcc, vcc, s[30:31]
    s_cmp_eq_u64 vcc, -1
    s_cbranch_scc1 L_done1
    s_sub_u32 s46, s46, 1
    s_cbranch_scc0 L_chk1
    s_sub_u32 s44, s44, 1
    s_cbranch_scc0 L_poll1
L_done1:
    ; STAMP 5
    v_mov_b32 v20, v{P}
    v_mov_b32 v21, v{P+2}
    v_mov_b32 v23, {f32hex(GELU_A)}
    s_nop 0
    v_permlane32_swap_b32 v20, v21
    s_nop 0
    v_add_f32 v20, v20, v21
    v_mov_b32 v21, v20
    s_nop 1
    v_permlane16_swap_b32 v20, v21
    s_nop 0
    v_add_f32 v20, v20, v21
    s_nop 1
    v_mov_b32_dpp v21, v20 row_ror:8 row_mask:0xf bank_mask:0xf
    v_cvt_pk_bf16_f32 v20, v20, v21
    v_lshlrev_b32 v21, 16, v20       ; g
    v_and_b32 v22, 0xffff0000, v20   ; u
    v_mul_f32 v20, v21, v21
    v_fmac_f32 v23, {f32hex(GELU_B)}, v20
    v_mul_f32 v20, v23, v21
    v_exp_f32 v20, v20
    s_nop 0
    v_add_f32 v20, 1.0, v20
    v_rcp_f32 v20, v20
    s_nop 0
    v_mul_f32 v20, v20, v21          ; gelu
    v_cvt_pk_bf16_f32 v20, v20, v20
    v_lshlrev_b32 v20, 16, v20
    v_mul_f32 v20, v20, v22          ; h
    v_cvt_pk_bf16_f32 v20, v20, v20
    s_nop 1
    v_mov_b32_dpp v20, v20 row_shl:4 row_mask:0xa bank_mask:0xf
    v_and_b32 v21, 0xffff, v20
    v_and_b32 v22, 0xffff0000, v20
    s_nop 0
""")
    for t in range(4):
        bc = t
        for k in range(4):
            A(f"    v_dot2c_f32_bf16_dpp v{A2+2*k}, v21, v{DD+4*t+k} row_newbcast:{bc} row_mask:0xf bank_mask:0xf")
            A(f"    v_dot2c_f32_bf16_dpp v{A2+2*k+1}, v22, v{DD+4*t+k} row_newbcast:{bc} row_mask:0xf bank_mask:0xf")
    reduce8(A2)
    A(f"""
    ds_write_b64 v{LW}, v[{A2}:{A2+1}] offset:4096
    s_waitcnt lgkmcnt(0)
    s_barrier
    ; STAMP 6
    s_cmp_lg_u32 s29, 0
    s_cbranch_scc1 L_cons
""")
    if fast:
        A(f"    v_cmp_eq_u32 vcc, s45, v{XI}")
    ldsreduce(4096)
    if fast:
        A(f"""
    s_cmp_eq_u64 vcc, -1
    s_cbranch_scc0 L_slowpub
    global_store_dwordx4 v{H2S}, v[4:7], s[16:17]
    ; STAMP 7
    s_branch L_end
L_slowpub:
""")
    A(f"""
    global_store_dwordx4 v{H2S}, v[4:7], s[16:17] sc1
""")
    if not fast: A("    ; STAMP 7")
    hw = "    s_waitcnt lgkmcnt(0)\n    s_getreg_b32 s47, hwreg(HW_REG_HW_ID)\n    s_and_b32 s47, s47, 0xffff\n    s_mul_i32 s47, s47, 100\n    s_add_u32 s62, s60, s47\n    s_addc_u32 s63, s61, 0" if hwid else ""
    A(f"""
    s_branch L_end
L_cons:
    s_cmp_lg_u32 s29, 1
    s_cbranch_scc1 L_end
    s_cmp_ge_u32 s18, 8
    s_cbranch_scc1 L_end
    v_mov_b32 v56, 0
    v_mov_b32 v57, 0
    s_lshl_b32 s27, s19, 8
    s_lshl_b32 s28, s18, 5
    s_add_u32 s27, s27, s28
    v_lshl_add_u32 v16, v{GI}, 2, s27
    s_mov_b32 exec_hi, 0x00ffffff
L_poll2:
    global_load_dwordx4 v[40:43], v{H2L}, s[16:17] sc1
    global_load_dwordx4 v[44:47], v{H2L}, s[16:17] offset:1024 sc1
    global_load_dwordx4 v[48:51], v{H2L}, s[16:17] offset:2048 sc1
    global_load_dwordx4 v[52:55], v{H2L}, s[16:17] offset:3072 sc1
    s_waitcnt vmcnt(0)
    v_cmp_eq_u32 vcc, s24, v41
    v_cmp_eq_u32 s[30:31], s25, v43
    v_cmp_eq_u32 s[32:33], s24, v45
    v_cmp_eq_u32 s[34:35], s25, v47
    v_cmp_eq_u32 s[36:37], s24, v49
    v_cmp_eq_u32 s[38:39], s25, v51
    v_cmp_eq_u32 s[40:41], s24, v53
    v_cmp_eq_u32 s[42:43], s25, v55
    s_and_b64 vcc, vcc, s[30:31]
    s_and_b64 s[32:33], s[32:33], s[34:35]
    s_and_b64 s[36:37], s[36:37], s[38:39]
    s_and_b64 s[40:41], s[40:41], s[42:43]
    s_and_b64 vcc, vcc, s[32:33]
    s_and_b64 s[36:37], s[36:37], s[40:41]
    s_and_b64 vcc, vcc, s[36:37]
    s_cmp_eq_u64 vcc, exec
    s_cbranch_scc1 L_done2
    s_sub_u32 s44, s44, 1
    s_cbranch_scc0 L_poll2
L_done2:
    ; STAMP 8
    v_add_f32 v40, v40, v44
    v_add_f32 v42, v42, v46
    v_add_f32 v48, v48, v52
    v_add_f32 v50, v50, v54
    v_add_f32 v56, v40, v48
    v_add_f32 v57, v42, v50
    s_mov_b64 exec, -1
    s_nop 0
    v_permlane32_swap_b32 v56, v57
    s_nop 0
    v_add_f32 v56, v56, v57
    s_nop 1
    v_add_f32_dpp v56, v56, v56 row_ror:8 row_mask:0xf bank_mask:0xf
    v_mov_b32 v57, v56
    s_nop 1
    v_permlane16_swap_b32 v56, v57
    s_nop 0
    v_add_f32 v56, v56, v57
    v_mov_b32 v57, v56
    s_nop 1
    v_permlane32_swap_b32 v56, v57
    s_nop 0
    v_cvt_pk_bf16_f32 v56, v56, v57
    s_mov_b64 exec, 0xff
    global_store_dword v16, v56, s[12:13] {outflag}
    ; DIAG_SPIN
    s_cmp_lg_u32 s2, 0
    s_cbranch_scc1 L_end
    v_mov_b32 v6, s24
    v_mov_b32 v42, {EPOCH}
    s_mov_b64 exec, 1
    global_store_dwordx2 v42, v[6:7], s[16:17]
L_end:
    ; STAMP 9
{hw}
L_exit:
    s_endpgm
""")
    A('.section .rodata,"a"'); A(".p2align 6"); A(kdesc(N1, 136, 48))
    return stampify("\n".join(o), stamps)

if __name__=="__main__":
    out=sys.argv[1]
    kw={}
    for a in sys.argv[2:]:
        k,v=a.split("=")
        if k in ("stamps","fast","prefetch","bar","w1","w2","w3","w4","pb","hwid"): kw[k]=(v=="1")
        elif k in ("align","inner","slp","first_sleep","rx","dpos"): kw[k]=int(v)
        else: kw[k]=v.replace("_"," ").replace("none","")
    open(out,"w").write(gen(**kw))
```

```python
import sys,re
def stampify(text, enable=True, base=60):
    out=[]
    for line in text.split("\n"):
        m=re.match(r"\s*; STAMP (\d+)\s*$", line)
        if m:
            if enable:
                n=int(m.group(1)); out.append(f"    s_memrealtime s[{base+2*n}:{base+2*n+1}]")
            continue
        m=re.match(r"\s*; STAMPS_OUT (\d+) (\d+) (\d+)\s*$", line)
        if m:
            if enable:
                n=int(m.group(1)); ws=int(m.group(2)); wpb=int(m.group(3))
                out.append("    s_mov_b64 exec, 1")
                out.append("    s_sleep 127")
                out.append("    s_sleep 127")
                out.append("    s_waitcnt lgkmcnt(0)")
                out.append("    v_lshrrev_b32 v150, 6, v155")
                out.append("    s_lshl_b32 s58, s2, 4")
                out.append("    v_add_u32 v150, s58, v150")
                out.append(f"    v_mul_u32_u24 v150, {n*8}, v150")
                out.append("    v_add_u32 v150, 0x8000000, v150")
                for i in range(n):
                    out.append(f"    v_mov_b32 v152, s{base+2*i}")
                    out.append(f"    v_mov_b32 v153, s{base+2*i+1}")
                    out.append(f"    global_store_dwordx2 v150, v[152:153], s[{ws}:{ws+1}] offset:{8*i}")
                    out.append("    s_nop 1")
            continue
        m=re.match(r"\s*; STAMPS_INIT (\d+)\s*$", line)
        if m:
            if enable:
                n=int(m.group(1))
                out.append("    v_mov_b32 v155, v0")
                for i in range(1,n):
                    out.append(f"    s_mov_b64 s[{base+2*i}:{base+2*i+1}], 0")
            continue
        out.append(line)
    t="\n".join(out)
    if enable:
        t=re.sub(r"\.amdhsa_next_free_vgpr \d+", ".amdhsa_next_free_vgpr 160", t)
        t=re.sub(r"\.amdhsa_accum_offset \d+", ".amdhsa_accum_offset 160", t)
        t=re.sub(r"\.amdhsa_next_free_sgpr \d+", ".amdhsa_next_free_sgpr 96", t)
    return t
if __name__=="__main__":
    t=open(sys.argv[1]).read()
    open(sys.argv[2],"w").write(stampify(t, True))
```

```python
from common import *
from stampify import stampify
import sys, re

EPOCH = 0x0
HOP2 = 0x1000
HOP1 = 0x40000

def gen(stamps=False, nt="", fast=True, align=12, inner=4, slp=1, outflag="", w4=True, pads=True, nchain=1,
        inner2=1, dpos=8, nb2=True, pfsz=0xa80, bar=True, st2="", ack=False, prio=True):
    o=[]; A=o.append
    N1="standalone__geglu_ffn__decode_kernel"
    A(HEADER.rstrip())
    A(f"; @launch grid=(224,1,1) block=(576,1,1) lds=8192")
    A('.amdgcn_target "amdgcn-amd-amdhsa--gfx950"')
    A(".text")
    A(f".globl {N1}\n.p2align {align}\n.type {N1},@function\n{N1}:")
    GA=8; DA=16; DB=17
    XV=20; XL=24; XH=32; GD=40; DD=72; AC=88; A2=96; P=104; XI=108; PF=109
    LW,LR,H1S,H1L,H2S,H2L,GI,XIA = 112,113,114,115,116,117,118,119
    Z=120
    Q=124
    w4st = f"    global_store_dwordx4 v{H2S}, v[{Z}:{Z+3}], s[16:17]" if w4 else ""
    padentry = "    s_mov_b64 exec, 0\n    s_branch L_pad0" if pads else ""
    hbar = "    s_barrier" if bar else ""
    A(f"""
    ; STAMP 0
    s_cmp_ge_u32 s2, 224
    s_cbranch_scc1 L_exit
    s_load_dwordx8 s[4:11], s[0:1], 0
    s_load_dwordx4 s[12:15], s[0:1], 32
    s_load_dwordx2 s[16:17], s[0:1], 48
    v_lshrrev_b32 v18, 6, v0         ; w
    s_nop 0
    v_readfirstlane_b32 s29, v18
    s_lshr_b32 s18, s2, 3            ; r
    s_and_b32 s19, s2, 7             ; j
    s_cmp_eq_u32 s29, 8
    s_cbranch_scc0 L_main
{"    s_setprio 3" if prio else ""}
    s_getpc_b64 s[20:21]
    v_and_b32 v1, 63, v0
    s_and_b32 s20, s20, 0xfffff000
    v_lshlrev_b32 v2, 7, v1
    v_min_u32 v2, {pfsz}, v2
    global_load_dword v{PF}, v2, s[20:21]
    s_mul_i32 s27, s19, 28
    s_add_u32 s28, s27, s18
    s_lshl_b32 s28, s28, 10
    s_add_u32 s28, s28, {HOP2}
    v_lshl_add_u32 v{H2S}, v1, 4, s28
    v_mov_b32 v{Z}, 0
    v_mov_b32 v{Z+1}, 0
    v_mov_b32 v{Z+2}, 0
    v_mov_b32 v{Z+3}, 0
    s_getreg_b32 s45, hwreg(HW_REG_XCC_ID, 0, 4)
    s_add_u32 s45, s45, 1
    s_lshl_b32 s30, s19, 5
    s_lshl_b32 s28, s18, 2
    s_add_u32 s28, s30, s28
    v_mov_b32 v5, s28
    v_mov_b32 v6, s45
    s_cmp_lt_u32 s18, 8
    s_waitcnt lgkmcnt(0)
    s_cbranch_scc0 L_h2
    s_mov_b64 exec, 1
    global_store_dword v5, v6, s[14:15] sc1
    global_load_dword v7, v{Z}, s[12:13]
    s_mov_b64 exec, -1
L_h2:
{w4st}
{padentry}
L_resume:
{hbar}
    s_waitcnt vmcnt(0)
    s_endpgm
L_main:
    v_and_b32 v1, 15, v0             ; c
    v_lshrrev_b32 v2, 4, v0          ; 4w+q (0..31)
    s_lshr_b32 s26, s19, 1           ; kc
    s_lshl_b32 s27, s26, 9
    v_lshl_add_u32 v3, v2, 4, s27
    s_mul_i32 s27, s26, {256*7168}
    s_lshl_b32 s28, s18, 8
    s_add_u32 s27, s27, s28
    v_mul_u32_u24 v4, {8*7168}, v2
    v_lshl_add_u32 v4, v1, 4, v4
    v_add_u32 v{GA}, s27, v4
""")
    for t in range(1,8):
        A(f"    v_add_u32 v{GA+t}, {7168*t}, v{GA}")
    A(f"""
    s_bitcmp1_b32 s19, 0
    s_waitcnt lgkmcnt(0)
    ; STAMP 1
    s_cselect_b64 s[20:21], s[8:9], s[6:7]
    global_load_dwordx4 v[{XV}:{XV+3}], v3, s[4:5]
""")
    for t in range(8):
        A(f"    global_load_dwordx4 v[{GD+4*t}:{GD+4*t+3}], v{GA+t}, s[20:21] {nt}")
    A(f"""
    s_load_dwordx2 s[22:23], s[16:17], {EPOCH}
    v_and_b32 v{LR}, 63, v0
    v_lshlrev_b32 v{LR}, 3, v{LR}
    s_mul_i32 s27, s19, 28
    s_add_u32 s28, s27, s18
    s_lshl_b32 s28, s28, 10
    s_add_u32 s28, s28, {HOP2}
    v_lshl_add_u32 v{H2S}, v{LR}, 1, s28
    v_mov_b32 v{Z}, 0
    v_mov_b32 v{Z+1}, 0
    v_mov_b32 v{Z+2}, 0
    v_mov_b32 v{Z+3}, 0
    s_getreg_b32 s45, hwreg(HW_REG_XCC_ID, 0, 4)
    s_add_u32 s45, s45, 1
    s_lshl_b32 s30, s19, 5
    s_lshl_b32 s27, s27, 10
    s_lshl_b32 s28, s18, 7
    s_add_u32 s27, s27, s28
    s_add_u32 s27, s27, {HOP2}
    v_bfe_u32 v19, v0, 3, 3          ; p / pr
    v_and_b32 v{GI}, 7, v0             ; gi
    v_lshlrev_b32 v{H2L}, 12, v19
    v_lshl_add_u32 v{H2L}, v{GI}, 4, v{H2L}
    v_add_u32 v{H2L}, s27, v{H2L}
    v_lshl_add_u32 v{XIA}, v{GI}, 2, s30
    s_lshl_b32 s27, s2, 10
    s_add_u32 s27, s27, {HOP1}
    v_lshl_add_u32 v{H1S}, v{LR}, 1, s27
    s_lshl_b32 s27, s18, 13
    s_add_u32 s27, s27, {HOP1}
    v_lshl_add_u32 v{H1L}, v19, 10, s27
    v_lshl_add_u32 v{H1L}, v18, 7, v{H1L}  ; + w*128
    v_lshl_add_u32 v{H1L}, v{GI}, 4, v{H1L}  ; + gi*16
    v_bfe_u32 v19, v0, 4, 2           ; q
    v_lshlrev_b32 v{LW}, 9, v18
    v_lshl_add_u32 v{LW}, v1, 5, v{LW}
    v_lshl_add_u32 v{LW}, v19, 3, v{LW}
    s_lshl_b32 s27, s18, 18
    s_lshl_b32 s28, s19, 8
    s_add_u32 s27, s27, s28
    s_add_u32 s27, s27, 4096
    v_bfe_u32 v19, v0, 4, 1
    v_lshl_add_u32 v4, v18, 1, v19
    v_bfe_u32 v19, v0, 5, 1
    v_lshl_add_u32 v4, v4, 3, v19
    v_lshlrev_b32 v4, 11, v4
    v_lshl_add_u32 v4, v1, 4, v4
    v_add_u32 v{DA}, s27, v4
    v_add_u32 v{DB}, 8192, v{DA}
    s_mov_b32 s44, 0x40000
    v_mov_b32 v{P+2}, 0
""")
    for i in range(8):
        A(f"    v_mov_b32 v{AC+i}, 0")
        A(f"    v_mov_b32 v{A2+i}, 0")
    for i in range(4):
        A(f"    v_mov_b32 v{Q+4*i+2}, 0")
    ns = 0
    def dloads():
        for t in range(4):
            A(f"    global_load_dwordx4 v[{DD+4*t}:{DD+4*t+3}], v{DA if t<2 else DB}, s[10:11] offset:{((t&1)-1)*4096} {nt}")
    if bar: A("    s_barrier")
    if dpos==0: dloads()
    nd = 4 if dpos==0 else 0
    A("    ; STAMP 2")
    A(f"    s_waitcnt vmcnt({8+ns+nd})")
    for t in range(8):
        d = XV + (t>>1)
        if t%2==0:
            A(f"    v_and_b32 v{XL+t}, 0xffff, v{d}")
            A(f"    v_lshlrev_b32 v{XH+t}, 16, v{d}")
        else:
            A(f"    v_lshrrev_b32 v{XL+t}, 16, v{d}")
            A(f"    v_and_b32 v{XH+t}, 0xffff0000, v{d}")
    for t in range(8):
        if t%3==0: A("    PAD")
        A(f"    s_waitcnt vmcnt({7-t+ns+nd})")
        for k in range(4):
            A(f"    v_dot2c_f32_bf16 v{AC+2*k}, v{XL+t}, v{GD+4*t+k}")
            A(f"    v_dot2c_f32_bf16 v{AC+2*k+1}, v{XH+t}, v{GD+4*t+k}")
    A("    ; STAMP 3")
    if dpos==8: dloads()
    def reduce8(AC, first_nop=True):
        if first_nop:
            A("    PADNOP")
            A("    s_nop 1")
        for i in range(4): A(f"    v_permlane32_swap_b32 v{AC+i}, v{AC+4+i}")
        for i in range(4): A(f"    v_add_f32 v{AC+i}, v{AC+i}, v{AC+4+i}")
        A("    s_nop 0")
        for i in range(2): A(f"    v_permlane16_swap_b32 v{AC+i}, v{AC+2+i}")
        A("    s_nop 0")
        for i in range(2): A(f"    v_add_f32 v{AC+i}, v{AC+i}, v{AC+2+i}")
    def ldsreduce(off):
        for i in range(8):
            A(f"    ds_read_b64 v[{40+2*i}:{41+2*i}], v{LR} offset:{off+512*i}")
        A("    PAD")
        A("    s_waitcnt lgkmcnt(4)")
        A("    v_pk_add_f32 v[40:41], v[40:41], v[42:43]")
        A("    v_pk_add_f32 v[44:45], v[44:45], v[46:47]")
        A("    s_waitcnt lgkmcnt(0)")
        A("    v_pk_add_f32 v[48:49], v[48:49], v[50:51]")
        A("    v_pk_add_f32 v[52:53], v[52:53], v[54:55]")
        A("    v_pk_add_f32 v[40:41], v[40:41], v[44:45]")
        A("    v_pk_add_f32 v[48:49], v[48:49], v[52:53]")
        A("    v_pk_add_f32 v[4:5], v[40:41], v[48:49]")
    reduce8(AC, first_nop=(dpos!=8))
    A(f"""
    ds_write_b64 v{LW}, v[{AC}:{AC+1}]
    PAD
    s_waitcnt lgkmcnt(0)
    s_barrier
    s_add_u32 s24, s22, 2
    s_or_b32 s24, s24, 1
    s_add_u32 s25, s23, 0x9e3779b9
    s_cmp_lg_u32 s29, 0
    s_cbranch_scc1 L_p1start
    v_mov_b32 v6, s24
    v_mov_b32 v7, s25
""")
    ldsreduce(0)
    A(f"""
    global_store_dwordx4 v{H1S}, v[4:7], s[16:17] sc1
    global_load_dword v{XI}, v{XIA}, s[14:15] sc1
    ; STAMP 4
L_p1start:
    s_barrier
L_poll1:
    global_load_dwordx4 v[{P}:{P+3}], v{H1L}, s[16:17] sc1
    s_mov_b32 s46, {inner}
L_chk1:
    s_sleep {slp}
    v_cmp_eq_u64 vcc, s[24:25], v[{P+2}:{P+3}]
    s_cmp_eq_u64 vcc, -1
    s_cbranch_scc1 L_done1
    s_sub_u32 s46, s46, 1
    s_cbranch_scc0 L_chk1
    s_sub_u32 s44, s44, 1
    s_cbranch_scc0 L_poll1
L_done1:
    ; STAMP 5
    v_mov_b32 v20, v{P}
    v_mov_b32 v21, v{P+1}
    v_mov_b32 v23, {f32hex(GELU_A)}
    PADNOP
    v_permlane32_swap_b32 v20, v21
    s_nop 0
    v_add_f32 v20, v20, v21
    v_mov_b32 v21, v20
    s_nop 1
    v_permlane16_swap_b32 v20, v21
    s_nop 0
    v_add_f32 v20, v20, v21
    s_nop 1
    v_mov_b32_dpp v21, v20 row_ror:8 row_mask:0xf bank_mask:0xf
    v_cvt_pk_bf16_f32 v20, v20, v21
    v_lshlrev_b32 v21, 16, v20       ; g
    v_and_b32 v22, 0xffff0000, v20   ; u
    v_mul_f32 v20, v21, v21
    v_fmac_f32 v23, {f32hex(GELU_B)}, v20
    v_mul_f32 v20, v23, v21
    v_exp_f32 v20, v20
    s_nop 0
    v_add_f32 v20, 1.0, v20
    v_rcp_f32 v20, v20
    PADNOP
    v_mul_f32 v20, v20, v21          ; gelu
    v_cvt_pk_bf16_f32 v20, v20, v20
    v_lshlrev_b32 v20, 16, v20
    v_mul_f32 v20, v20, v22          ; h
    v_cvt_pk_bf16_f32 v20, v20, v20
    s_nop 1
    v_mov_b32_dpp v20, v20 row_shl:4 row_mask:0xa bank_mask:0xf
    v_and_b32 v21, 0xffff, v20
    v_and_b32 v22, 0xffff0000, v20
    s_nop 0
""")
    for t in range(4):
        if t in (1,3): A("    PAD")
        for k in range(4):
            A(f"    v_dot2c_f32_bf16_dpp v{A2+2*k}, v21, v{DD+4*t+k} row_newbcast:{t} row_mask:0xf bank_mask:0xf")
            A(f"    v_dot2c_f32_bf16_dpp v{A2+2*k+1}, v22, v{DD+4*t+k} row_newbcast:{t} row_mask:0xf bank_mask:0xf")
    reduce8(A2)
    A(f"""
    ds_write_b64 v{LW}, v[{A2}:{A2+1}] offset:4096
    s_cmp_lg_u32 s29, 0
    s_waitcnt lgkmcnt(0)
    s_barrier
    ; STAMP 6
    s_cbranch_scc1 L_cons
""")
    ldsreduce(4096)
    if fast:
        i = len(o)-9
        o.insert(i, f"    v_cmp_eq_u32 vcc, s45, v{XI}")
        o.insert(i+1, "    s_cmp_eq_u64 vcc, -1")
        A(f"""
    s_cbranch_scc0 L_slowpub
    global_store_dwordx4 v{H2S}, v[4:7], s[16:17] {st2}
    ; STAMP 7
{"    s_waitcnt vmcnt(0)" if ack else ""}
    s_branch L_end
L_slowpub:
""")
    A(f"""
    global_store_dwordx4 v{H2S}, v[4:7], s[16:17] sc1
    s_branch L_end
L_cons:
    s_lshl_b32 s28, s29, 6
    s_add_u32 s28, s28, s18
    s_sub_u32 s28, s28, 64
    s_cmp_lt_u32 s28, 8
    s_cbranch_scc0 L_end
    s_mov_b32 exec_hi, 0x00ffffff
L_poll2:
""")
    for i in range(4):
        A(f"    global_load_dwordx4 v[{Q+4*i}:{Q+4*i+3}], v{H2L}, s[16:17] offset:{1024*i} sc1")
    if nb2:
        A(f"    s_mov_b32 s46, {inner2}")
        A("L_chk2:")
    else:
        A("    s_waitcnt vmcnt(0)")
    A(f"""
    PAD
    v_cmp_eq_u64 vcc, s[24:25], v[{Q+2}:{Q+3}]
    v_cmp_eq_u64 s[30:31], s[24:25], v[{Q+6}:{Q+7}]
    v_cmp_eq_u64 s[32:33], s[24:25], v[{Q+10}:{Q+11}]
    v_cmp_eq_u64 s[34:35], s[24:25], v[{Q+14}:{Q+15}]
    s_and_b64 vcc, vcc, s[30:31]
    s_and_b64 s[32:33], s[32:33], s[34:35]
    s_and_b64 vcc, vcc, s[32:33]
    s_cmp_eq_u64 vcc, exec
    s_cbranch_scc1 L_done2
""")
    if nb2:
        A("    s_sub_u32 s46, s46, 1")
        A("    s_cbranch_scc0 L_chk2")
    A(f"""
    s_sub_u32 s44, s44, 1
    s_cbranch_scc0 L_poll2
L_done2:
    ; STAMP 8
    v_pk_add_f32 v[40:41], v[{Q}:{Q+1}], v[{Q+4}:{Q+5}]
    v_pk_add_f32 v[42:43], v[{Q+8}:{Q+9}], v[{Q+12}:{Q+13}]
    s_lshl_b32 s27, s19, 8
    s_lshl_b32 s28, s18, 5
    v_pk_add_f32 v[{Z}:{Z+1}], v[40:41], v[42:43]
    s_mov_b64 exec, -1
    s_add_u32 s27, s27, s28
    v_permlane32_swap_b32 v{Z}, v{Z+1}
    PADNOP
    v_add_f32 v{Z}, v{Z}, v{Z+1}
    v_lshl_add_u32 v16, v{GI}, 2, s27
    s_nop 0
    v_add_f32_dpp v{Z}, v{Z}, v{Z} row_ror:8 row_mask:0xf bank_mask:0xf
    v_mov_b32 v{Z+1}, v{Z}
    s_nop 1
    v_permlane16_swap_b32 v{Z}, v{Z+1}
    s_nop 0
    v_add_f32 v{Z}, v{Z}, v{Z+1}
    v_mov_b32 v{Z+1}, v{Z}
    s_nop 1
    v_permlane32_swap_b32 v{Z}, v{Z+1}
    s_mov_b64 exec, 0xff
    v_cvt_pk_bf16_f32 v{Z}, v{Z}, v{Z+1}
    global_store_dword v16, v{Z}, s[12:13] {outflag}
    ; DIAG_SPIN
    s_cmp_lg_u32 s2, 0
    s_cbranch_scc1 L_end
    v_mov_b32 v6, s24
    v_mov_b32 v7, s25
    v_mov_b32 v42, {EPOCH}
    s_mov_b64 exec, 1
    PAD
    global_store_dwordx2 v42, v[6:7], s[16:17]
L_end:
    ; STAMP 9
L_exit:
    s_endpgm
""")
    A('.section .rodata,"a"'); A(".p2align 6"); A(kdesc(N1, 140, 48))
    text="\n".join(o)
    lines=text.split("\n")
    idx=[i for i,l in enumerate(lines) if l.strip() in ("PAD","PADNOP")]
    n=len(idx)
    for k,i in enumerate(idx):
        if pads:
            nxt = k+nchain
            tgt = f"L_pad{nxt}" if nxt<n else "L_resume"
            lines[i]=f"L_pad{k}:\n    s_cbranch_execz {tgt}"
        else:
            lines[i]="    s_nop 0" if lines[i].strip()=="PADNOP" else ""
    return stampify("\n".join(lines), stamps)

if __name__=="__main__":
    out=sys.argv[1]
    kw={}
    for a in sys.argv[2:]:
        k,v=a.split("=")
        if k in ("stamps","fast","w4","pads","nb2","bar","ack","prio"): kw[k]=(v=="1")
        elif k in ("align","inner","slp","dpos","nchain","inner2","pfsz"): kw[k]=int(v)
        else: kw[k]=v.replace("_"," ").replace("none","")
    open(out,"w").write(gen(**kw))
```

```python
from common import *
from stampify import stampify
import sys, re

EPOCH = 0x0
HOP2 = 0x1000
HOP1 = 0x40000

def gen(stamps=False, nt="", fast=True, align=12, inner=4, slp=1, outflag="", inner2=1, dpos=8, pfsz=0xa80,
        bar=True, st2="", ack=False, slow_sleep=4, twophase=True, nearly=4, first_sleep=0, dclk=-1, w0wait=False):
    o=[]; A=o.append
    N1="standalone__geglu_ffn__decode_kernel"
    A(HEADER.rstrip())
    A(f"; @launch grid=(256,1,1) block=(512,1,1) lds=8192")
    A('.amdgcn_target "amdgcn-amd-amdhsa--gfx950"')
    A(".text")
    A(f".globl {N1}\n.p2align {align}\n.type {N1},@function\n{N1}:")
    GA=8; DA=16; DB=17
    XV=20; XL=24; XH=32; GD=40; DD=72; AC=88; A2=96; P=104; XI=108; PF=109
    LW,LR,H1S,H1L,H2S,XIA = 110,111,112,113,114,115
    A(f"""
    ; STAMP 0
    s_load_dwordx8 s[4:11], s[0:1], 0
    s_load_dwordx4 s[12:15], s[0:1], 32
    s_load_dwordx2 s[16:17], s[0:1], 48
    s_cmp_ge_u32 s2, 256
    s_cbranch_scc1 L_exit
    s_getpc_b64 s[20:21]
    v_lshlrev_b32 v1, 7, v0
    v_cmp_gt_u32 vcc, {pfsz}, v1
    s_and_saveexec_b64 s[22:23], vcc
    s_cbranch_execz L_nopf
    global_load_dword v{PF}, v1, s[20:21]
L_nopf:
    s_mov_b64 exec, -1
    v_lshrrev_b32 v18, 6, v0         ; w
    s_lshr_b32 s18, s2, 3            ; r
    s_and_b32 s19, s2, 7             ; j
    v_readfirstlane_b32 s29, v18
    s_cmp_ge_u32 s18, 28
    s_cbranch_scc1 L_cons
    v_and_b32 v1, 15, v0             ; c
    v_lshrrev_b32 v2, 4, v0          ; 4w+q (0..31)
    s_lshr_b32 s26, s19, 1           ; kc
    s_lshl_b32 s27, s26, 9
    v_lshl_add_u32 v3, v2, 4, s27
    s_mul_i32 s27, s26, {256*7168}
    s_lshl_b32 s28, s18, 8
    s_add_u32 s27, s27, s28
    v_mul_u32_u24 v4, {8*7168}, v2
    v_lshl_add_u32 v4, v1, 4, v4
    v_add_u32 v{GA}, s27, v4
""")
    for t in range(1,8):
        A(f"    v_add_u32 v{GA+t}, {7168*t}, v{GA}")
    A(f"""
    s_bitcmp1_b32 s19, 0
    s_waitcnt lgkmcnt(0)
    ; STAMP 1
    s_cselect_b64 s[20:21], s[8:9], s[6:7]
    global_load_dwordx4 v[{XV}:{XV+3}], v3, s[4:5]
""")
    for t in range(8):
        A(f"    global_load_dwordx4 v[{GD+4*t}:{GD+4*t+3}], v{GA+t}, s[20:21] {nt}")
    A(f"""
    s_load_dwordx2 s[22:23], s[16:17], {EPOCH}
    v_and_b32 v{LR}, 63, v0
    v_lshlrev_b32 v{LR}, 3, v{LR}
    s_mul_i32 s27, s19, 28
    s_add_u32 s28, s27, s18
    s_lshl_b32 s28, s28, 10
    s_add_u32 s28, s28, {HOP2}
    v_lshl_add_u32 v{H2S}, v{LR}, 1, s28
    s_getreg_b32 s45, hwreg(HW_REG_XCC_ID, 0, 4)
    s_add_u32 s45, s45, 1
    s_lshl_b32 s30, s19, 4
    v_and_b32 v19, 3, v0
    v_lshl_add_u32 v{XIA}, v19, 2, s30
    s_lshl_b32 s27, s2, 10
    s_add_u32 s27, s27, {HOP1}
    v_lshl_add_u32 v{H1S}, v{LR}, 1, s27
    s_lshl_b32 s27, s18, 13
    s_add_u32 s27, s27, {HOP1}
    v_bfe_u32 v19, v0, 3, 3          ; p
    v_lshl_add_u32 v{H1L}, v19, 10, s27
    v_lshl_add_u32 v{H1L}, v18, 7, v{H1L}  ; + w*128
    v_and_b32 v19, 7, v0
    v_lshl_add_u32 v{H1L}, v19, 4, v{H1L}  ; + gi*16
    v_bfe_u32 v19, v0, 4, 2           ; q
    v_lshlrev_b32 v{LW}, 9, v18
    v_lshl_add_u32 v{LW}, v1, 5, v{LW}
    v_lshl_add_u32 v{LW}, v19, 3, v{LW}
    s_lshl_b32 s27, s18, 18
    s_lshl_b32 s28, s19, 8
    s_add_u32 s27, s27, s28
    s_add_u32 s27, s27, 4096
    v_bfe_u32 v19, v0, 4, 1
    v_lshl_add_u32 v4, v18, 1, v19
    v_bfe_u32 v19, v0, 5, 1
    v_lshl_add_u32 v4, v4, 3, v19
    v_lshlrev_b32 v4, 11, v4
    v_lshl_add_u32 v4, v1, 4, v4
    v_add_u32 v{DA}, s27, v4
    v_add_u32 v{DB}, 8192, v{DA}
    s_mov_b32 s44, 0x40000
    v_mov_b32 v{P+2}, 0
""")
    for i in range(8):
        A(f"    v_mov_b32 v{AC+i}, 0")
        A(f"    v_mov_b32 v{A2+i}, 0")
    def dloads():
        for t in range(4):
            A(f"    global_load_dwordx4 v[{DD+4*t}:{DD+4*t+3}], v{DA if t<2 else DB}, s[10:11] offset:{((t&1)-1)*4096} {nt}")
    if bar and dpos<20: A("    s_barrier")
    if dpos==0: dloads()
    nd = 4 if dpos==0 else 0
    A("    ; STAMP 2")
    A(f"    s_waitcnt vmcnt({8+nd})")
    for t in range(8):
        d = XV + (t>>1)
        if t%2==0:
            A(f"    v_and_b32 v{XL+t}, 0xffff, v{d}")
            A(f"    v_lshlrev_b32 v{XH+t}, 16, v{d}")
        else:
            A(f"    v_lshrrev_b32 v{XL+t}, 16, v{d}")
            A(f"    v_and_b32 v{XH+t}, 0xffff0000, v{d}")
    for t in range(8):
        if 0<dpos<8 and t==dpos:
            dloads(); nd=4
        if 20<=dpos<30 and t==dpos-20:
            A("    s_barrier"); dloads(); nd=4
        if dpos>=30 and t==dpos-30:
            A(f"    s_cmp_ge_u32 s29, {nearly}")
            A("    s_cbranch_scc1 L_late")
            A("    s_waitcnt vmcnt(0)")
            for tt in range(t,8):
                for k in range(4):
                    A(f"    v_dot2c_f32_bf16 v{AC+2*k}, v{XL+tt}, v{GD+4*tt+k}")
                    A(f"    v_dot2c_f32_bf16 v{AC+2*k+1}, v{XH+tt}, v{GD+4*tt+k}")
            A("    s_barrier")
            dloads()
            A("    s_branch L_gudone")
            A("L_late:")
            A("    s_barrier")
        A(f"    s_waitcnt vmcnt({7-t+nd})")
        for k in range(4):
            A(f"    v_dot2c_f32_bf16 v{AC+2*k}, v{XL+t}, v{GD+4*t+k}")
            A(f"    v_dot2c_f32_bf16 v{AC+2*k+1}, v{XH+t}, v{GD+4*t+k}")
    if dpos>=30: A("L_gudone:")
    A("    ; STAMP 3")
    if dpos==8: dloads()
    if dpos==28:
        A("    s_barrier"); dloads()
    if dpos in (11,12):
        for t in range(2 if dpos==11 else 1):
            A(f"    global_load_dwordx4 v[{DD+4*t}:{DD+4*t+3}], v{DA if t<2 else DB}, s[10:11] offset:{((t&1)-1)*4096} {nt}")
    def reduce8(AC, first_nop=True):
        if first_nop: A("    s_nop 2")
        for i in range(4): A(f"    v_permlane32_swap_b32 v{AC+i}, v{AC+4+i}")
        for i in range(4): A(f"    v_add_f32 v{AC+i}, v{AC+i}, v{AC+4+i}")
        A("    s_nop 0")
        for i in range(2): A(f"    v_permlane16_swap_b32 v{AC+i}, v{AC+2+i}")
        A("    s_nop 0")
        for i in range(2): A(f"    v_add_f32 v{AC+i}, v{AC+i}, v{AC+2+i}")
    def ldsreduce(off, mid=""):
        for i in range(8):
            A(f"    ds_read_b64 v[{40+2*i}:{41+2*i}], v{LR} offset:{off+512*i}")
        if mid: A(mid)
        A("    s_waitcnt lgkmcnt(4)")
        A("    v_pk_add_f32 v[40:41], v[40:41], v[42:43]")
        A("    v_pk_add_f32 v[44:45], v[44:45], v[46:47]")
        A("    s_waitcnt lgkmcnt(0)")
        A("    v_pk_add_f32 v[48:49], v[48:49], v[50:51]")
        A("    v_pk_add_f32 v[52:53], v[52:53], v[54:55]")
        A("    v_pk_add_f32 v[40:41], v[40:41], v[44:45]")
        A("    v_pk_add_f32 v[48:49], v[48:49], v[52:53]")
        A("    v_pk_add_f32 v[4:5], v[40:41], v[48:49]")
    reduce8(AC, first_nop=(dpos!=8))
    A(f"""
    ds_write_b64 v{LW}, v[{AC}:{AC+1}]
    s_waitcnt lgkmcnt(0)
    s_barrier
    s_add_u32 s24, s22, 2
    s_or_b32 s24, s24, 1
    s_add_u32 s25, s23, 0x9e3779b9
    s_cmp_lg_u32 s29, 0
    s_cbranch_scc1 L_p1start
""")
    ldsreduce(0, "    v_mov_b32 v6, s24\n    v_mov_b32 v7, s25")
    dl=[f"    global_load_dwordx4 v[{DD+4*t}:{DD+4*t+3}], v{DA if t<2 else DB}, s[10:11] offset:{((t&1)-1)*4096} {nt}" for t in range(4)]
    dlate=""
    if dpos==9: dlate="\n".join(dl)
    if dpos>=30: dlate="\n".join([f"    s_cmp_lt_u32 s29, {nearly}","    s_cbranch_scc1 L_fs"]+dl)
    if dpos>=30 and dclk>=0:
        dlate="\n".join([f"    s_cmp_lt_u32 s29, {nearly}","    s_cbranch_scc1 L_ew"]+dl+["    s_branch L_eb","L_ew:"]
              + (["    s_cmp_eq_u32 s29, 0","    s_cbranch_scc1 L_eb"] if not w0wait else []) + [f"    s_waitcnt vmcnt({dclk})","L_eb:","    s_barrier"])
    if dpos==10: dlate="\n".join([dl[0],dl[1],"    s_waitcnt vmcnt(1)",dl[2],"    s_waitcnt vmcnt(1)",dl[3]])
    if dpos==11: dlate="\n".join(dl[2:])
    if dpos==12: dlate="\n".join(dl[1:])
    A(f"""
    global_store_dwordx4 v{H1S}, v[4:7], s[16:17] sc1
    global_load_dword v{XI}, v{XIA}, s[14:15] sc1
    ; STAMP 4
L_p1start:
    s_barrier
{dlate}
L_fs:
{f"    s_sleep {first_sleep}" if first_sleep else ""}
L_poll1:
    global_load_dwordx4 v[{P}:{P+3}], v{H1L}, s[16:17] sc1
    s_mov_b32 s46, {inner}
L_chk1:
    s_sleep {slp}
    v_cmp_eq_u64 vcc, s[24:25], v[{P+2}:{P+3}]
    s_cmp_eq_u64 vcc, -1
    s_cbranch_scc1 L_done1
    s_sub_u32 s46, s46, 1
    s_cbranch_scc0 L_chk1
    s_sub_u32 s44, s44, 1
    s_cbranch_scc0 L_poll1
L_done1:
    ; STAMP 5
    v_mov_b32 v20, v{P}
    v_mov_b32 v21, v{P+1}
    v_mov_b32 v23, {f32hex(GELU_A)}
    s_nop 0
    v_permlane32_swap_b32 v20, v21
    s_nop 0
    v_add_f32 v20, v20, v21
    v_mov_b32 v21, v20
    s_nop 1
    v_permlane16_swap_b32 v20, v21
    s_nop 0
    v_add_f32 v20, v20, v21
    s_nop 1
    v_mov_b32_dpp v21, v20 row_ror:8 row_mask:0xf bank_mask:0xf
    v_cvt_pk_bf16_f32 v20, v20, v21
    v_lshlrev_b32 v21, 16, v20       ; g
    v_and_b32 v22, 0xffff0000, v20   ; u
    v_mul_f32 v20, v21, v21
    v_fmac_f32 v23, {f32hex(GELU_B)}, v20
    v_mul_f32 v20, v23, v21
    v_exp_f32 v20, v20
    s_nop 0
    v_add_f32 v20, 1.0, v20
    v_rcp_f32 v20, v20
    s_nop 0
    v_mul_f32 v20, v20, v21          ; gelu
    v_cvt_pk_bf16_f32 v20, v20, v20
    v_lshlrev_b32 v20, 16, v20
    v_mul_f32 v20, v20, v22          ; h
    v_cvt_pk_bf16_f32 v20, v20, v20
    s_nop 1
    v_mov_b32_dpp v20, v20 row_shl:4 row_mask:0xa bank_mask:0xf
    v_and_b32 v21, 0xffff, v20
    v_and_b32 v22, 0xffff0000, v20
    s_nop 0
""")
    for t in range(4):
        for k in range(4):
            A(f"    v_dot2c_f32_bf16_dpp v{A2+2*k}, v21, v{DD+4*t+k} row_newbcast:{t} row_mask:0xf bank_mask:0xf")
            A(f"    v_dot2c_f32_bf16_dpp v{A2+2*k+1}, v22, v{DD+4*t+k} row_newbcast:{t} row_mask:0xf bank_mask:0xf")
    reduce8(A2)
    A(f"""
    ds_write_b64 v{LW}, v[{A2}:{A2+1}] offset:4096
    s_cmp_lg_u32 s29, 0
    s_waitcnt lgkmcnt(0)
    s_barrier
    ; STAMP 6
    s_cbranch_scc1 L_end
""")
    ldsreduce(4096, f"    v_cmp_eq_u32 vcc, s45, v{XI}\n    s_cmp_eq_u64 vcc, -1")
    if fast:
        A(f"""
    s_cbranch_scc0 L_slowpub
    global_store_dwordx4 v{H2S}, v[4:7], s[16:17] {st2}
    ; STAMP 7
{"    s_waitcnt vmcnt(0)" if ack else ""}
    s_branch L_end
L_slowpub:
""")
    Q=8
    A(f"""
    global_store_dwordx4 v{H2S}, v[4:7], s[16:17] sc1
    s_branch L_end
L_cons:
    s_cmp_ge_u32 s29, 4
    s_cbranch_scc1 L_exit
    s_sub_u32 s18, s18, 28
    s_mul_i32 s27, s19, {28*1024}
    s_lshl_b32 s28, s18, 8
    s_add_u32 s27, s27, s28
    s_lshl_b32 s28, s29, 6
    s_add_u32 s27, s27, s28
    s_add_u32 s27, s27, {HOP2}
    v_bfe_u32 v1, v0, 2, 4           ; pr
    v_and_b32 v2, 3, v0              ; gi
    v_lshlrev_b32 v3, 11, v1
    v_lshl_add_u32 v3, v2, 4, v3
    v_add_u32 v3, s27, v3
    s_lshl_b32 s27, s19, 8
    s_lshl_b32 s28, s18, 6
    s_add_u32 s27, s27, s28
    s_lshl_b32 s28, s29, 4
    s_add_u32 s27, s27, s28
    v_lshl_add_u32 v4, v2, 2, s27
    s_getreg_b32 s45, hwreg(HW_REG_XCC_ID, 0, 4)
    s_add_u32 s45, s45, 1
    s_lshl_b32 s27, s19, 4
    s_lshl_b32 s28, s18, 2
    s_add_u32 s27, s27, s28
    v_mov_b32 v5, s27
    v_mov_b32 v6, s45
    v_mov_b32 v16, 0
    v_mov_b32 v17, 0
    v_and_b32 v7, 31, v0
    v_lshlrev_b32 v7, 2, v7
    s_mov_b32 s44, 0x40000
    s_waitcnt lgkmcnt(0)
    s_load_dwordx2 s[22:23], s[16:17], {EPOCH}
    s_waitcnt lgkmcnt(0)
    s_add_u32 s24, s22, 2
    s_or_b32 s24, s24, 1
    s_add_u32 s25, s23, 0x9e3779b9
    s_barrier
    s_cmp_lg_u32 s29, 0
    s_cbranch_scc1 L_cpoll
    s_mov_b64 exec, 1
    global_store_dword v5, v6, s[14:15] sc1
    s_mov_b64 exec, -1
    s_cmp_lg_u32 s2, 224
    s_cbranch_scc1 L_cpoll
L_xall:
    global_load_dword v18, v7, s[14:15] sc1
    s_waitcnt vmcnt(0)
    v_cmp_ne_u32 vcc, 0, v18
    s_cmp_eq_u64 vcc, -1
    s_cbranch_scc1 L_cpoll
    s_sleep 4
    s_sub_u32 s44, s44, 1
    s_cbranch_scc0 L_xall
L_cpoll:
    ; STAMP 1
    s_mov_b32 exec_hi, 0x00ffffff
""")
    if twophase:
        A(f"""
L_slowpoll:
    global_load_dwordx4 v[{Q}:{Q+3}], v3, s[16:17] sc1
    global_load_dwordx4 v[{Q+4}:{Q+7}], v3, s[16:17] offset:1024 sc1
    s_waitcnt vmcnt(0)
    v_cmp_eq_u64 vcc, s[24:25], v[{Q+2}:{Q+3}]
    v_cmp_eq_u64 s[30:31], s[24:25], v[{Q+6}:{Q+7}]
    s_or_b64 vcc, vcc, s[30:31]
    s_cbranch_scc1 L_poll2
    s_sleep {slow_sleep}
    s_sub_u32 s44, s44, 1
    s_cbranch_scc0 L_slowpoll
""")
    else:
        A(f"    v_mov_b32 v{Q+2}, 0\n    v_mov_b32 v{Q+6}, 0")
    A(f"""
L_poll2:
    global_load_dwordx4 v[{Q}:{Q+3}], v3, s[16:17] sc1
    global_load_dwordx4 v[{Q+4}:{Q+7}], v3, s[16:17] offset:1024 sc1
    s_mov_b32 s46, {inner2}
L_chk2:
    v_cmp_eq_u64 vcc, s[24:25], v[{Q+2}:{Q+3}]
    v_cmp_eq_u64 s[30:31], s[24:25], v[{Q+6}:{Q+7}]
    s_and_b64 vcc, vcc, s[30:31]
    s_cmp_eq_u64 vcc, exec
    s_cbranch_scc1 L_done2
    s_sub_u32 s46, s46, 1
    s_cbranch_scc0 L_chk2
    s_sub_u32 s44, s44, 1
    s_cbranch_scc0 L_poll2
L_done2:
    ; STAMP 8
    v_pk_add_f32 v[16:17], v[{Q}:{Q+1}], v[{Q+4}:{Q+5}]
    s_mov_b64 exec, -1
    s_nop 0
    v_permlane32_swap_b32 v16, v17
    s_nop 0
    v_add_f32 v16, v16, v17
    s_nop 1
    v_add_f32_dpp v16, v16, v16 row_ror:8 row_mask:0xf bank_mask:0xf
    s_nop 1
    v_add_f32_dpp v16, v16, v16 row_ror:4 row_mask:0xf bank_mask:0xf
    v_mov_b32 v17, v16
    s_nop 1
    v_permlane16_swap_b32 v16, v17
    s_nop 0
    v_add_f32 v16, v16, v17
    v_mov_b32 v17, v16
    s_nop 1
    v_permlane32_swap_b32 v16, v17
    s_mov_b64 exec, 0xf
    v_cvt_pk_bf16_f32 v16, v16, v17
    global_store_dword v4, v16, s[12:13] {outflag}
    ; DIAG_SPIN
    s_lshl_b32 s27, s29, 8
    s_add_u32 s27, s27, s2
    s_cmp_lg_u32 s27, 224
    s_cbranch_scc1 L_end
    v_mov_b32 v6, s24
    v_mov_b32 v7, s25
    v_mov_b32 v5, {EPOCH}
    s_mov_b64 exec, 1
    global_store_dwordx2 v5, v[6:7], s[16:17]
L_end:
    ; STAMP 9
L_exit:
    s_endpgm
""")
    A('.section .rodata,"a"'); A(".p2align 6"); A(kdesc(N1, 116, 48))
    return stampify("\n".join(o), stamps)

if __name__=="__main__":
    out=sys.argv[1]
    kw={}
    for a in sys.argv[2:]:
        k,v=a.split("=")
        if k in ("stamps","fast","bar","ack","twophase","w0wait"): kw[k]=(v=="1")
        elif k in ("align","inner","slp","dpos","inner2","pfsz","slow_sleep","nearly","first_sleep","dclk"): kw[k]=int(v)
        else: kw[k]=v.replace("_"," ").replace("none","")
    open(out,"w").write(gen(**kw))
```

```python
from common import *
from stampify import stampify
import sys, re

EPOCH = 0x0
HOP2 = 0x1000
HOP1 = 0x40000

def gen(stamps=False, nt="", ntd=None, fast=True, align=12, inner=4, slp=1, outflag="", inner2=0, pfsz=0xb80,
        slow_sleep=4, nearly=2, kb=0, dclk=0, first_sleep=0, split=0, pre=0, t0=-1, ne=4, step=1, pbar=True, w0skip=True, tlbd=False, fin2=False):
    if ntd is None: ntd=nt
    o=[]; A=o.append
    N1="standalone__geglu_ffn__decode_kernel"
    A(HEADER.rstrip())
    A(f"; @launch grid=(256,1,1) block=(256,1,1) lds=8192")
    A('.amdgcn_target "amdgcn-amd-amdhsa--gfx950"')
    A(".text")
    A(f".globl {N1}\n.p2align {align}\n.type {N1},@function\n{N1}:")
    GA=8
    XV=24
    AX=32
    GD=64
    DD=128
    D1=160; D2=164; E1=168; E2=172
    P=176
    SEL=184
    DA,DB,LW,LR,H1S,H1L,H2S,XIA,XI,PF = 188,189,190,191,192,193,194,195,196,197
    NV=200
    pre1=pre2=""
    tlb=""
    if tlbd:
        tlb="""    v_and_b32 v8, 7, v0
    v_mul_u32_u24 v8, 0xfffc0, v8
    global_load_dword v9, v8, s[10:11]"""
    if pre:
        pre1=f"""    s_lshr_b32 s26, s19, 1
    s_lshl_b32 s27, s26, 2
    s_add_u32 s27, s27, s18
    s_lshl_b32 s27, s27, 2
    s_add_u32 s27, s27, s29          ; 16kc + 4k + w
    s_mul_i32 s27, s27, {16*7168}
    s_add_u32 s27, s27, {12*7168+2048}
    v_bfe_u32 v2, v0, 4, 2
    v_mul_u32_u24 v2, 7168, v2
    v_and_b32 v1, 15, v0
    v_lshl_add_u32 v2, v1, 4, v2
    s_bitcmp1_b32 s19, 0"""
        L=["    s_cselect_b64 s[20:21], s[8:9], s[6:7]",
           "    s_sub_u32 s28, 0x100, s20",
           "    s_and_b32 s28, s28, 0x300",
           "    s_add_u32 s27, s27, s28",
           "    v_add_u32 v2, s27, v2"]
        for n in range(pre):
            L.append("    v_add_u32 v3, 4096, v2")
            for i in range(7):
                L.append(f"    global_load_dwordx4 v[32:35], v{2 if i<4 else 3}, s[20:21] offset:{((i&3)-2)*1024}")
            if n+1<pre: L.append(f"    v_subrev_u32 v2, {4*7168}, v2")
        pre2="\n".join(L)
    if split==0:
        gcol="    s_lshl_b32 s28, s18, 8"; gcol2=""
        drow="    s_lshl_b32 s27, s18, 18"; drow2=""
    else:
        if split==512:
            gcol="    s_and_b32 s31, s18, 0xfc\n    s_add_u32 s31, s31, s18\n    s_lshl_b32 s28, s31, 7"
        else:
            gcol="    s_and_b32 s31, s18, 0xfe\n    s_add_u32 s31, s31, s18\n    s_lshl_b32 s28, s31, 7"
        gcol2=f"    v_and_b32 v5, 8, v0\n    v_mul_u32_u24 v5, {(split-128)//8}, v5\n    v_add_u32 v4, v5, v4"
        drow="    s_lshl_b32 s27, s31, 17"
        drow2=f"    v_and_b32 v5, 0x80, v0\n    v_mul_u32_u24 v5, {(split//128-1)*64*2048//128}, v5\n    v_add_u32 v4, v5, v4"
    A(f"""
    ; STAMP 0
    s_load_dwordx8 s[4:11], s[0:1], 0
    s_load_dwordx4 s[12:15], s[0:1], 32
    s_load_dwordx2 s[16:17], s[0:1], 48
    s_cmp_ge_u32 s2, 256
    s_cbranch_scc1 L_exit
    s_getpc_b64 s[20:21]
    v_lshlrev_b32 v1, 7, v0
    v_cmp_gt_u32 vcc, {pfsz}, v1
    s_and_saveexec_b64 s[22:23], vcc
    s_cbranch_execz L_nopf
    global_load_dword v{PF}, v1, s[20:21]
L_nopf:
    s_mov_b64 exec, -1
    v_lshrrev_b32 v7, 6, v0          ; w
    s_lshr_b32 s18, s2, 3            ; r
    s_and_b32 s19, s2, 7             ; j
    v_readfirstlane_b32 s29, v7
    s_getreg_b32 s45, hwreg(HW_REG_XCC_ID, 0, 4)
    s_add_u32 s45, s45, 1
    s_cmp_lt_u32 s18, 28
    s_cbranch_scc1 L_prod
    s_sub_u32 s18, s18, 28
    s_lshl_b32 s27, s19, 4
    s_lshl_b32 s28, s18, 2
    s_add_u32 s27, s27, s28
    v_mov_b32 v5, s27
    v_mov_b32 v6, s45
{pre1}
    v_cmp_eq_u32 vcc, 0, v0
    s_waitcnt lgkmcnt(0)
    s_load_dwordx2 s[22:23], s[16:17], {EPOCH}
    s_cbranch_vccz L_noxi
    s_mov_b64 exec, 1
    global_store_dword v5, v6, s[14:15] sc1
    s_mov_b64 exec, -1
L_noxi:
{tlb}
{pre2}
    s_branch L_cons
L_prod:
    v_and_b32 v1, 15, v0             ; c
    v_lshrrev_b32 v2, 4, v0          ; 4w+q (0..15)
    s_lshr_b32 s26, s19, 1           ; kc
    s_lshl_b32 s27, s26, 9
    v_lshl_add_u32 v3, v2, 5, s27
    s_mul_i32 s27, s26, {256*7168}
{gcol}
    s_add_u32 s27, s27, s28
    v_mul_u32_u24 v4, {16*7168}, v2
    v_lshl_add_u32 v4, v1, 4, v4
{gcol2}
    v_add_u32 v{GA}, s27, v4
""")
    for t in range(1,16):
        A(f"    v_add_u32 v{GA+t}, {7168*t}, v{GA}")
    A(f"""
    s_bitcmp1_b32 s19, 0
    s_waitcnt lgkmcnt(0)
    ; STAMP 1
    s_cselect_b64 s[20:21], s[8:9], s[6:7]
    global_load_dwordx4 v[{XV}:{XV+3}], v3, s[4:5]
    global_load_dwordx4 v[{XV+4}:{XV+7}], v3, s[4:5] offset:16
""")
    for t in range(16):
        A(f"    global_load_dwordx4 v[{GD+4*t}:{GD+4*t+3}], v{GA+t}, s[20:21] {nt}")
    A(f"""
    s_load_dwordx2 s[22:23], s[16:17], {EPOCH}
    ; selectors
    v_bfe_u32 v8, v0, 3, 1           ; hi
    v_mul_u32_u24 v8, 0x202, v8
    v_add_u32 v8, 0x100, v8
    v_lshlrev_b32 v9, 16, v8
    v_or_b32 v9, 0x0c0c, v9
    v_or_b32 v8, 0x0c0c0000, v8
    v_and_b32 v10, 1, v0
    v_cmp_eq_u32 vcc, 1, v10
    v_bfe_u32 v10, v0, 1, 2          ; mm>>1
    v_mov_b32 v11, 0x0c0c0c0c
    v_cndmask_b32 v8, v8, v9, vcc
""")
    for d in range(4):
        A(f"    v_cmp_eq_u32 vcc, {d}, v10")
        A("    s_nop 1")
        A(f"    v_cndmask_b32 v{SEL+d}, v11, v8, vcc")
    A(f"""
    v_and_b32 v{LR}, 63, v0
    v_lshlrev_b32 v{LR}, 3, v{LR}
    s_mul_i32 s27, s19, 28
    s_add_u32 s28, s27, s18
    s_lshl_b32 s28, s28, 10
    s_add_u32 s28, s28, {HOP2}
    v_lshl_add_u32 v{H2S}, v{LR}, 1, s28
    s_lshl_b32 s30, s19, 4
    v_and_b32 v9, 3, v0
    v_lshl_add_u32 v{XIA}, v9, 2, s30
    s_lshl_b32 s27, s2, 10
    s_add_u32 s27, s27, {HOP1}
    v_lshl_add_u32 v{H1S}, v{LR}, 1, s27
    s_lshl_b32 s27, s18, 13
    s_add_u32 s27, s27, {HOP1}
    v_lshl_add_u32 v{H1L}, v2, 6, s27
    v_bfe_u32 v10, v0, 2, 2          ; kc
    v_lshl_add_u32 v{H1L}, v10, 11, v{H1L}
    v_bfe_i32 v10, v0, 2, 1
    v_xor_b32 v9, v9, v10
    v_and_b32 v9, 3, v9              ; gl'
    v_lshl_add_u32 v{H1L}, v9, 4, v{H1L}
    v_lshrrev_b32 v9, 5, v0
    v_lshlrev_b32 v{LW}, 9, v9
    v_lshl_add_u32 v{LW}, v1, 5, v{LW}
    v_and_b32 v9, 16, v0
    v_add_u32 v{LW}, v9, v{LW}
{drow}
    s_lshl_b32 s28, s19, 8
    s_add_u32 s27, s27, s28
    s_add_u32 s27, s27, 4096
    v_lshlrev_b32 v4, 14, v2
    v_lshl_add_u32 v4, v1, 4, v4
{drow2}
    v_add_u32 v{DA}, s27, v4
    v_add_u32 v{DB}, 8192, v{DA}
    s_mov_b32 s44, 0x40000
    v_mov_b32 v{P+2}, 0
    v_mov_b32 v{P+6}, 0
""")
    for i in range(16):
        A(f"    v_mov_b32 v{D1+i}, 0")
    dl=[f"    global_load_dwordx4 v[{DD+4*t}:{DD+4*t+3}], v{DA if t<4 else DB}, s[10:11] offset:{((t&3)-2)*2048} {ntd}" for t in range(8)]
    A("    ; STAMP 2")
    A("    s_waitcnt vmcnt(16)")
    for p in range(8):
        for d in range(4):
            A(f"    v_perm_b32 v{AX+4*p+d}, v{XV+p}, v{XV+p}, v{SEL+d}")
    def gu(t):
        D = D1 if t%2==0 else D2
        A(f"    s_waitcnt vmcnt({15-t})")
        A(f"    v_mfma_f32_16x16x32_bf16 v[{D}:{D+3}], v[{AX+4*(t>>1)}:{AX+4*(t>>1)+3}], v[{GD+4*t}:{GD+4*t+3}], v[{D}:{D+3}]")
    if t0<0:
        for t in range(kb): gu(t)
        A(f"    s_cmp_lt_u32 s29, {nearly}")
        A("    s_cbranch_scc1 L_nob1")
        A("    s_barrier")
        A("L_nob1:")
        for t in range(kb,16): gu(t)
        A("    ; STAMP 3")
        A("    s_cbranch_scc0 L_gudone")
        A("    s_barrier")
        for l in dl: A(l)
        A("L_gudone:")
    else:
        issued=0
        for t in range(16):
            D = D1 if t%2==0 else D2
            A(f"    s_waitcnt vmcnt({15-t+issued})")
            A(f"    v_mfma_f32_16x16x32_bf16 v[{D}:{D+3}], v[{AX+4*(t>>1)}:{AX+4*(t>>1)+3}], v[{GD+4*t}:{GD+4*t+3}], v[{D}:{D+3}]")
            if t>=t0 and (t-t0)%step==0 and issued<ne and t<15:
                A(dl[issued]); issued+=1
        ne=issued
        A("    ; STAMP 3")
        A("    s_nop 0")
    def ldswrite(Da, Db, off, nop):
        A("    s_mov_b32 exec_hi, 0")
        A(f"    s_nop {nop}")
        A(f"    ds_write_b128 v{LW}, v[{Da}:{Da+3}] offset:{off}")
        A("    s_not_b64 exec, exec")
        A(f"    ds_write_b128 v{LW}, v[{Db}:{Db+3}] offset:{off}")
        A("    s_mov_b64 exec, -1")
    def ldsreduce(off, mid=""):
        for i in range(8):
            A(f"    ds_read_b64 v[{8+2*i}:{9+2*i}], v{LR} offset:{off+512*i}")
        if mid: A(mid)
        A("    s_waitcnt lgkmcnt(4)")
        A("    v_pk_add_f32 v[8:9], v[8:9], v[10:11]")
        A("    v_pk_add_f32 v[12:13], v[12:13], v[14:15]")
        A("    s_waitcnt lgkmcnt(0)")
        A("    v_pk_add_f32 v[16:17], v[16:17], v[18:19]")
        A("    v_pk_add_f32 v[20:21], v[20:21], v[22:23]")
        A("    v_pk_add_f32 v[8:9], v[8:9], v[12:13]")
        A("    v_pk_add_f32 v[16:17], v[16:17], v[20:21]")
        A("    v_pk_add_f32 v[4:5], v[8:9], v[16:17]")
    ldswrite(D1, D2, 0, 4)
    A(f"""
    s_cmp_lg_u32 s29, 0
    s_waitcnt lgkmcnt(0)
    s_barrier
    s_cbranch_scc1 L_p1start
""")
    ldsreduce(0, "    s_add_u32 s24, s22, 2\n    s_or_b32 s24, s24, 1\n    s_add_u32 s25, s23, 0x9e3779b9\n    v_mov_b32 v6, s24\n    v_mov_b32 v7, s25")
    A(f"""
    global_store_dwordx4 v{H1S}, v[4:7], s[16:17] sc1
    global_load_dword v{XI}, v{XIA}, s[14:15] sc1
    ; STAMP 4
L_p1start:
    s_barrier
""")
    if t0<0:
        A(f"    s_cmp_lt_u32 s29, {nearly}")
        A("    s_cbranch_scc1 L_ew")
        for l in dl: A(l)
        A(f"""
    s_branch L_eb
L_ew:
    s_cmp_eq_u32 s29, 0
    s_cbranch_scc1 L_eb
    s_waitcnt vmcnt({dclk})
L_eb:""")
    else:
        for l in dl[ne:]: A(l)
        if w0skip:
            A("    s_cmp_eq_u32 s29, 0")
            A("    s_cbranch_scc1 L_eb")
        A(f"    s_waitcnt vmcnt({dclk})")
        A("L_eb:")
    A(f"""
    s_add_u32 s24, s22, 2
    s_or_b32 s24, s24, 1
    s_add_u32 s25, s23, 0x9e3779b9
    v_mov_b32 v23, {f32hex(GELU_A)}
{"    s_barrier" if pbar else ""}
{f"    s_sleep {first_sleep}" if first_sleep else ""}
L_poll1:
    global_load_dwordx4 v[{P}:{P+3}], v{H1L}, s[16:17] sc1
    global_load_dwordx4 v[{P+4}:{P+7}], v{H1L}, s[16:17] offset:1024 sc1
    s_mov_b32 s46, {inner}
L_chk1:
{f"    s_sleep {slp}" if slp else ""}
    v_cmp_eq_u64 vcc, s[24:25], v[{P+2}:{P+3}]
    v_cmp_eq_u64 s[30:31], s[24:25], v[{P+6}:{P+7}]
    s_and_b64 vcc, vcc, s[30:31]
    s_cmp_eq_u64 vcc, -1
    s_cbranch_scc1 L_done1
    s_sub_u32 s46, s46, 1
    s_cbranch_scc0 L_chk1
    s_sub_u32 s44, s44, 1
    s_cbranch_scc0 L_poll1
L_done1:
    ; STAMP 5
    v_add_f32_dpp v20, v{P}, v{P} row_ror:8 row_mask:0xf bank_mask:0x3
    v_add_f32_dpp v20, v{P+1}, v{P+1} row_ror:8 row_mask:0xf bank_mask:0xc
    v_add_f32_dpp v21, v{P+4}, v{P+4} row_ror:8 row_mask:0xf bank_mask:0x3
    v_add_f32_dpp v21, v{P+5}, v{P+5} row_ror:8 row_mask:0xf bank_mask:0xc
    v_add_f32_dpp v20, v20, v20 row_half_mirror row_mask:0xf bank_mask:0xf
    s_nop 0
    v_add_f32_dpp v21, v21, v21 row_half_mirror row_mask:0xf bank_mask:0xf
    v_cvt_pk_bf16_f32 v20, v20, v21
    v_lshlrev_b32 v21, 16, v20       ; g
    v_mul_f32 v24, v21, v21
    v_fmac_f32 v23, {f32hex(GELU_B)}, v24
    v_mul_f32 v24, v23, v21
    v_exp_f32 v24, v24
    v_and_b32 v22, 0xffff0000, v20   ; u
    v_add_f32 v24, 1.0, v24
    v_rcp_f32 v24, v24
    s_nop 0
    v_mul_f32 v24, v24, v21          ; gelu
    v_cvt_pk_bf16_f32 v24, v24, v24
    v_lshlrev_b32 v24, 16, v24
    v_mul_f32 v24, v24, v22          ; h
    s_nop 1
    v_mov_b32_dpp v25, v24 row_ror:8 row_mask:0xf bank_mask:0xf
    v_cvt_pk_bf16_f32 v24, v24, v25  ; (even, odd) in lanes with bit3=0
    s_nop 1
""")
    def bc(p): A(f"    v_mov_b32_dpp v{26+p}, v24 row_newbcast:{p} row_mask:0xf bank_mask:0xf")
    def pm(p):
        for d in range(4): A(f"    v_perm_b32 v{AX+4*p+d}, v{26+p}, v{26+p}, v{SEL+d}")
    def mf(t):
        D = E1 if t%2==0 else E2
        A(f"    v_mfma_f32_16x16x32_bf16 v[{D}:{D+3}], v[{AX+4*(t>>1)}:{AX+4*(t>>1)+3}], v[{DD+4*t}:{DD+4*t+3}], v[{D}:{D+3}]")
    bc(0); pm(0); bc(1); bc(2)
    mf(0); bc(3);
    A(f"    v_perm_b32 v{AX+4}, v27, v27, v{SEL}")
    mf(1)
    for d in range(1,4): A(f"    v_perm_b32 v{AX+4+d}, v27, v27, v{SEL+d}")
    A(f"    v_perm_b32 v{AX+8}, v28, v28, v{SEL}")
    A(f"    v_perm_b32 v{AX+9}, v28, v28, v{SEL+1}")
    mf(2)
    A(f"    v_perm_b32 v{AX+10}, v28, v28, v{SEL+2}")
    A(f"    v_perm_b32 v{AX+11}, v28, v28, v{SEL+3}")
    mf(3)
    A(f"    v_perm_b32 v{AX+12}, v29, v29, v{SEL}")
    A(f"    v_perm_b32 v{AX+13}, v29, v29, v{SEL+1}")
    mf(4)
    A(f"    v_perm_b32 v{AX+14}, v29, v29, v{SEL+2}")
    A(f"    v_perm_b32 v{AX+15}, v29, v29, v{SEL+3}")
    mf(5)
    A("    s_nop 0")
    mf(6); mf(7)
    ldswrite(E1, E2, 4096, 5)
    A(f"""
    s_cmp_lg_u32 s29, 0
    s_waitcnt lgkmcnt(0)
    s_barrier
    ; STAMP 6
    s_cbranch_scc1 L_end
""")
    ldsreduce(4096, f"    v_cmp_eq_u32 vcc, s45, v{XI}\n    s_cmp_eq_u64 vcc, -1")
    if fast:
        A(f"""
    s_cbranch_scc0 L_slowpub
    global_store_dwordx4 v{H2S}, v[4:7], s[16:17]
    ; STAMP 7
    s_branch L_end
L_slowpub:
""")
    Q=8
    if fin2:
        final=f"""    v_pk_add_f32 v[16:17], v[{Q}:{Q+1}], v[{Q+4}:{Q+5}]
    s_mov_b64 exec, -1
    s_nop 0
    v_permlane32_swap_b32 v16, v17
    v_add_f32 v16, v16, v17
    s_nop 1
    v_add_f32_dpp v16, v16, v16 row_ror:8 row_mask:0xf bank_mask:0xf
    s_nop 1
    v_add_f32_dpp v17, v16, v16 row_ror:4 row_mask:0xf bank_mask:0xf
    v_add_f32_dpp v16, v16, v16 row_ror:4 row_mask:0xf bank_mask:0xf
    s_nop 1
    v_permlane16_swap_b32 v16, v17
    s_mov_b64 exec, s[38:39]
    v_add_f32 v16, v16, v17
    v_cvt_pk_bf16_f32 v16, v16, v16
    global_store_short v4, v16, s[12:13] {outflag}"""
        outaddr="""    v_lshl_add_u32 v4, v2, 2, s27
    v_bfe_u32 v19, v0, 5, 1
    v_lshl_add_u32 v4, v19, 1, v4
    s_mov_b32 s38, 0xf
    s_mov_b32 s39, 0xf"""
    else:
        final=f"""    v_pk_add_f32 v[16:17], v[{Q}:{Q+1}], v[{Q+4}:{Q+5}]
    s_mov_b64 exec, -1
    s_nop 0
    v_permlane32_swap_b32 v16, v17
    s_nop 0
    v_add_f32 v16, v16, v17
    s_nop 1
    v_add_f32_dpp v16, v16, v16 row_ror:8 row_mask:0xf bank_mask:0xf
    s_nop 1
    v_add_f32_dpp v16, v16, v16 row_ror:4 row_mask:0xf bank_mask:0xf
    v_mov_b32 v17, v16
    s_nop 1
    v_permlane16_swap_b32 v16, v17
    s_nop 0
    v_add_f32 v16, v16, v17
    v_mov_b32 v17, v16
    s_nop 1
    v_permlane32_swap_b32 v16, v17
    s_mov_b64 exec, 0xf
    v_cvt_pk_bf16_f32 v16, v16, v17
    global_store_dword v4, v16, s[12:13] {outflag}"""
        outaddr="    v_lshl_add_u32 v4, v2, 2, s27"
    A(f"""
    global_store_dwordx4 v{H2S}, v[4:7], s[16:17] sc1
    s_branch L_end
L_cons:
    s_mul_i32 s27, s19, {28*1024}
    s_lshl_b32 s28, s18, 8
    s_add_u32 s27, s27, s28
    s_lshl_b32 s28, s29, 6
    s_add_u32 s27, s27, s28
    s_add_u32 s27, s27, {HOP2}
    v_bfe_u32 v1, v0, 2, 4           ; pr
    v_and_b32 v2, 3, v0              ; gi
    v_lshlrev_b32 v3, 11, v1
    v_lshl_add_u32 v3, v2, 4, v3
    v_add_u32 v3, s27, v3
    s_lshl_b32 s27, s19, 8
    s_lshl_b32 s28, s18, 6
    s_add_u32 s27, s27, s28
    s_lshl_b32 s28, s29, 4
    s_add_u32 s27, s27, s28
{outaddr}
    v_mov_b32 v16, 0
    v_mov_b32 v17, 0
    v_mov_b32 v18, 0
    v_and_b32 v7, 31, v0
    v_lshlrev_b32 v7, 2, v7
    s_mov_b32 s44, 0x40000
    s_waitcnt lgkmcnt(0)
    s_add_u32 s24, s22, 2
    s_or_b32 s24, s24, 1
    s_add_u32 s25, s23, 0x9e3779b9
    s_barrier
    s_cmp_lg_u32 s29, 0
    s_cbranch_scc1 L_cpoll
    s_mov_b64 exec, 1
    global_store_dword v5, v6, s[14:15] offset:128 sc1
    s_mov_b64 exec, -1
L_cpoll:
    ; STAMP 1
    s_mov_b32 exec_hi, 0x00ffffff
L_slowpoll:
    global_load_dwordx4 v[{Q}:{Q+3}], v3, s[16:17] sc1
    global_load_dwordx4 v[{Q+4}:{Q+7}], v3, s[16:17] offset:1024 sc1
    s_waitcnt vmcnt(0)
    v_cmp_eq_u64 vcc, s[24:25], v[{Q+2}:{Q+3}]
    v_cmp_eq_u64 s[30:31], s[24:25], v[{Q+6}:{Q+7}]
    s_or_b64 vcc, vcc, s[30:31]
    s_cbranch_scc1 L_fastp
    s_sleep {slow_sleep}
    s_sub_u32 s44, s44, 1
    s_cbranch_scc0 L_slowpoll
L_fastp:
    s_lshl_b32 s36, s29, 8
    s_add_u32 s36, s36, s2
    s_cmp_lg_u32 s36, 224
    s_cbranch_scc1 L_poll2
    global_load_dword v18, v7, s[14:15] offset:128 sc1
L_poll2:
    global_load_dwordx4 v[{Q}:{Q+3}], v3, s[16:17] sc1
    global_load_dwordx4 v[{Q+4}:{Q+7}], v3, s[16:17] offset:1024 sc1
    s_mov_b32 s46, {inner2}
L_chk2:
    v_cmp_eq_u64 vcc, s[24:25], v[{Q+2}:{Q+3}]
    v_cmp_eq_u64 s[30:31], s[24:25], v[{Q+6}:{Q+7}]
    s_and_b64 vcc, vcc, s[30:31]
    s_cmp_eq_u64 vcc, exec
    s_cbranch_scc1 L_done2
    s_sub_u32 s46, s46, 1
    s_cbranch_scc0 L_chk2
    s_sub_u32 s44, s44, 1
    s_cbranch_scc0 L_poll2
L_done2:
    ; STAMP 8
{final}
    ; DIAG_SPIN
    s_cmp_lg_u32 s36, 224
    s_cbranch_scc1 L_end
    ; epoch update once every consumer has read the old one
    s_mov_b64 exec, 0xffffffff
    s_mov_b32 exec_hi, 0
L_xall:
    v_cmp_ne_u32 vcc, 0, v18
    s_cmp_eq_u64 vcc, exec
    s_cbranch_scc1 L_xok
    global_load_dword v18, v7, s[14:15] offset:128 sc1
    s_waitcnt vmcnt(0)
    s_sub_u32 s44, s44, 1
    s_cbranch_scc0 L_xall
L_xok:
    v_mov_b32 v6, s24
    v_mov_b32 v7, s25
    v_mov_b32 v5, {EPOCH}
    s_mov_b64 exec, 1
    global_store_dwordx2 v5, v[6:7], s[16:17]
L_end:
    ; STAMP 9
L_exit:
    s_endpgm
""")
    A('.section .rodata,"a"'); A(".p2align 6"); A(kdesc(N1, NV, 48))
    t=stampify("\n".join(o), stamps)
    if stamps:
        for a,b in (("v150","v250"),("v152","v252"),("v153","v253"),("v155","v255"),("152:153","252:253")):
            pass
    return t

if __name__=="__main__":
    out=sys.argv[1]
    kw={}
    for a in sys.argv[2:]:
        k,v=a.split("=")
        if k in ("stamps","fast","pbar","w0skip","tlbd","fin2"): kw[k]=(v=="1")
        elif k in ("align","inner","slp","inner2","pfsz","slow_sleep","nearly","kb","dclk","first_sleep","split","pre","t0","ne","step"): kw[k]=int(v)
        else: kw[k]=v.replace("_"," ").replace("none","")
    open(out,"w").write(gen(**kw))
```

```python
from common import *
from stampify import stampify
import sys, re

EPOCH = 0x0
HOP2 = 0x1000
HOP1 = 0x40000

def gen(stamps=False, nt="", ntd=None, fast=True, align=12, inner=4, slp=1, outflag="", inner2=0, pfsz=0xb80,
        slow_sleep=4, nearly=2, kb=0, dclk=0, first_sleep=0, split=0, pre=0, t0=-1, ne=4, step=1, pbar=True, w0skip=True, tlbd=False, fin2=False, ib=(), priv=False, pfnt="", lay=0, pord=0, g2=False):
    if ntd is None: ntd=nt
    o=[]; A=o.append
    N1="standalone__geglu_ffn__decode_kernel"
    A(HEADER.rstrip())
    A(f"; @launch grid=(256,1,1) block=(256,1,1) lds=8192")
    A('.amdgcn_target "amdgcn-amd-amdhsa--gfx950"')
    A(".text")
    A(f".globl {N1}\n.p2align {align}\n.type {N1},@function\n{N1}:")
    GA=8
    XV=24
    AX=32
    GD=64
    DD=128
    D1=160; D2=164; E1=168; E2=172
    P=176
    SEL=184
    DA,DB,LW,LR,H1S,H1L,H2S,XIA,XI,PF = 188,189,190,191,192,193,194,195,196,197
    NV=200
    if priv:
        h1s=f"""    s_lshl_b32 s27, s18, 16
    s_lshl_b32 s28, s19, 10
    s_add_u32 s27, s27, s28
    s_lshl_b32 s28, s29, 14
    s_add_u32 s27, s27, s28
    s_add_u32 s27, s27, {HOP1}
    v_lshl_add_u32 v{H1S}, v{LR}, 1, s27
    v_add_u32 v198, 8192, v{H1S}"""
    else:
        h1s=f"""    s_lshl_b32 s27, s2, 10
    s_add_u32 s27, s27, {HOP1}
    v_lshl_add_u32 v{H1S}, v{LR}, 1, s27"""
    pre1=pre2=""
    tlb=""
    if tlbd:
        tlb="""    v_and_b32 v8, 7, v0
    v_mul_u32_u24 v8, 0xfffc0, v8
    global_load_dword v9, v8, s[10:11]"""
    if pre:
        pre1=f"""    s_lshr_b32 s26, s19, 1
    s_lshl_b32 s27, s26, 2
    s_add_u32 s27, s27, s18
    s_lshl_b32 s27, s27, 2
    s_add_u32 s27, s27, s29          ; 16kc + 4k + w
    s_mul_i32 s27, s27, {16*7168}
    s_add_u32 s27, s27, {(12 if pord==0 else 16-4*pre)*7168+2048}
    v_bfe_u32 v2, v0, 4, 2
    v_mul_u32_u24 v2, 7168, v2
    v_and_b32 v1, 15, v0
    v_lshl_add_u32 v2, v1, 4, v2
    s_bitcmp1_b32 s19, 0"""
        L=["    s_cselect_b64 s[20:21], s[8:9], s[6:7]",
           "    s_sub_u32 s28, 0x100, s20",
           "    s_and_b32 s28, s28, 0x300",
           "    s_add_u32 s27, s27, s28",
           "    v_add_u32 v2, s27, v2"]
        for n in range(pre):
            L.append("    v_add_u32 v3, 4096, v2")
            for i in range(7):
                L.append(f"    global_load_dwordx4 v[32:35], v{2 if i<4 else 3}, s[20:21] offset:{((i&3)-2)*1024} {pfnt}")
            if n+1<pre: L.append(f"    v_subrev_u32 v2, {4*7168}, v2" if pord==0 else f"    v_add_u32 v2, {4*7168}, v2")
        pre2="\n".join(L)
    stub_body=f"""    ; consumer stub: publish XCC id as early as possible
    s_sub_u32 s18, s18, 28
    s_lshl_b32 s27, s19, 4
    s_lshl_b32 s28, s18, 2
    s_add_u32 s27, s27, s28
    v_mov_b32 v5, s27
    v_mov_b32 v6, s45
{pre1}
    v_cmp_eq_u32 vcc, 0, v0
    s_waitcnt lgkmcnt(0)
    s_load_dwordx2 s[22:23], s[16:17], {EPOCH}
    s_cbranch_vccz L_noxi
    s_mov_b64 exec, 1
    global_store_dword v5, v6, s[14:15] sc1
    s_mov_b64 exec, -1
L_noxi:
{tlb}
{pre2}
    s_branch L_cons"""
    if lay==0:
        stub_top="    s_cmp_lt_u32 s18, 28\n    s_cbranch_scc1 L_prod\n"+stub_body; stub_end=""
    else:
        stub_top="    s_cmp_lt_u32 s18, 28\n    s_cbranch_scc0 L_stub"; stub_end="L_stub:\n"+stub_body.replace("    s_branch L_cons","")
    if split==0:
        gcol="    s_lshl_b32 s28, s18, 8"; gcol2=""
        drow="    s_lshl_b32 s27, s18, 18"; drow2=""
    else:
        if split==512:
            gcol="    s_and_b32 s31, s18, 0xfc\n    s_add_u32 s31, s31, s18\n    s_lshl_b32 s28, s31, 7"
        else:
            gcol="    s_and_b32 s31, s18, 0xfe\n    s_add_u32 s31, s31, s18\n    s_lshl_b32 s28, s31, 7"
        gcol2=f"    v_and_b32 v5, 8, v0\n    v_mul_u32_u24 v5, {(split-128)//8}, v5\n    v_add_u32 v4, v5, v4"
        drow="    s_lshl_b32 s27, s31, 17"
        drow2=f"    v_and_b32 v5, 0x80, v0\n    v_mul_u32_u24 v5, {(split//128-1)*64*2048//128}, v5\n    v_add_u32 v4, v5, v4"
    A(f"""
    ; STAMP 0
    s_load_dwordx8 s[4:11], s[0:1], 0
    s_load_dwordx4 s[12:15], s[0:1], 32
    s_load_dwordx2 s[16:17], s[0:1], 48
    s_cmp_ge_u32 s2, 256
    s_cbranch_scc1 L_exit
    s_getpc_b64 s[20:21]
    v_lshlrev_b32 v1, 7, v0
    v_cmp_gt_u32 vcc, {pfsz}, v1
    s_and_saveexec_b64 s[22:23], vcc
    s_cbranch_execz L_nopf
    global_load_dword v{PF}, v1, s[20:21]
L_nopf:
    s_mov_b64 exec, -1
    v_lshrrev_b32 v7, 6, v0          ; w
    s_lshr_b32 s18, s2, 3            ; r
    s_and_b32 s19, s2, 7             ; j
    v_readfirstlane_b32 s29, v7
    s_getreg_b32 s45, hwreg(HW_REG_XCC_ID, 0, 4)
    s_add_u32 s45, s45, 1
{stub_top}
L_prod:
    v_and_b32 v1, 15, v0             ; c
    v_lshrrev_b32 v2, 4, v0          ; 4w+q (0..15)
    s_lshr_b32 s26, s19, 1           ; kc
    s_lshl_b32 s27, s26, 9
    v_lshl_add_u32 v3, v2, 5, s27
    s_mul_i32 s27, s26, {256*7168}
{gcol}
    s_add_u32 s27, s27, s28
    v_mul_u32_u24 v4, {16*7168}, v2
    v_lshl_add_u32 v4, v1, 4, v4
{gcol2}
    v_add_u32 v{GA}, s27, v4
""")
    if lay: A("    s_movk_i32 s28, 7168")
    for t in range(1,16):
        if lay: A(f"    v_add_u32 v{GA+t}, s28, v{GA+t-1}")
        else: A(f"    v_add_u32 v{GA+t}, {7168*t}, v{GA}")
    A(f"""
    s_bitcmp1_b32 s19, 0
    s_waitcnt lgkmcnt(0)
    ; STAMP 1
    s_cselect_b64 s[20:21], s[8:9], s[6:7]
    global_load_dwordx4 v[{XV}:{XV+3}], v3, s[4:5]
    global_load_dwordx4 v[{XV+4}:{XV+7}], v3, s[4:5] offset:16
""")
    for t in range(16):
        if t in ib: A("    s_barrier")
        A(f"    global_load_dwordx4 v[{GD+4*t}:{GD+4*t+3}], v{GA+t}, s[20:21] {nt}")
    A(f"""
    s_load_dwordx2 s[22:23], s[16:17], {EPOCH}
    ; selectors
    v_bfe_u32 v8, v0, 3, 1           ; hi
    v_mul_u32_u24 v8, 0x202, v8
    v_add_u32 v8, 0x100, v8
    v_lshlrev_b32 v9, 16, v8
    v_or_b32 v9, 0x0c0c, v9
    v_or_b32 v8, 0x0c0c0000, v8
    v_and_b32 v10, 1, v0
    v_cmp_eq_u32 vcc, 1, v10
    v_bfe_u32 v10, v0, 1, 2          ; mm>>1
    v_mov_b32 v11, 0x0c0c0c0c
    v_cndmask_b32 v8, v8, v9, vcc
""")
    for d in range(4):
        A(f"    v_cmp_eq_u32 vcc, {d}, v10")
        A("    s_nop 1")
        A(f"    v_cndmask_b32 v{SEL+d}, v11, v8, vcc")
    A(f"""
    v_and_b32 v{LR}, 63, v0
    v_lshlrev_b32 v{LR}, 3, v{LR}
    s_mul_i32 s27, s19, 28
    s_add_u32 s28, s27, s18
    s_lshl_b32 s28, s28, 10
    s_add_u32 s28, s28, {HOP2}
    v_lshl_add_u32 v{H2S}, v{LR}, 1, s28
    s_lshl_b32 s30, s19, 4
    v_and_b32 v9, 3, v0
    v_lshl_add_u32 v{XIA}, v9, 2, s30
{h1s}
    s_lshl_b32 s27, {"s2" if priv else "s18"}, 13
    s_add_u32 s27, s27, {HOP1}
    v_lshl_add_u32 v{H1L}, v2, 6, s27
    v_bfe_u32 v10, v0, 2, 2          ; kc
    v_lshl_add_u32 v{H1L}, v10, 11, v{H1L}
    v_bfe_i32 v10, v0, 2, 1
    v_xor_b32 v9, v9, v10
    v_and_b32 v9, 3, v9              ; gl'
    v_lshl_add_u32 v{H1L}, v9, 4, v{H1L}
    v_lshrrev_b32 v9, 5, v0
    v_lshlrev_b32 v{LW}, 9, v9
    v_lshl_add_u32 v{LW}, v1, 5, v{LW}
    v_and_b32 v9, 16, v0
    v_add_u32 v{LW}, v9, v{LW}
{drow}
    s_lshl_b32 s28, s19, 8
    s_add_u32 s27, s27, s28
    s_add_u32 s27, s27, 4096
    v_lshlrev_b32 v4, 14, v2
    v_lshl_add_u32 v4, v1, 4, v4
{drow2}
    v_add_u32 v{DA}, s27, v4
    v_add_u32 v{DB}, 8192, v{DA}
    s_mov_b32 s44, 0x40000
    v_mov_b32 v{P+2}, 0
    v_mov_b32 v{P+6}, 0
""")
    for i in range(16):
        A(f"    v_mov_b32 v{D1+i}, 0")
    dl=[f"    global_load_dwordx4 v[{DD+4*t}:{DD+4*t+3}], v{DA if t<4 else DB}, s[10:11] offset:{((t&3)-2)*2048} {ntd}" for t in range(8)]
    A("    s_waitcnt vmcnt(16)")
    for p in range(8):
        for d in range(4):
            A(f"    v_perm_b32 v{AX+4*p+d}, v{XV+p}, v{XV+p}, v{SEL+d}")
    def gu(t):
        D = D1 if t%2==0 else D2
        A(f"    s_waitcnt vmcnt({15-t})")
        A(f"    v_mfma_f32_16x16x32_bf16 v[{D}:{D+3}], v[{AX+4*(t>>1)}:{AX+4*(t>>1)+3}], v[{GD+4*t}:{GD+4*t+3}], v[{D}:{D+3}]")
    if t0<0:
        for t in range(kb): gu(t)
        A(f"    s_cmp_lt_u32 s29, {nearly}")
        A("    s_cbranch_scc1 L_nob1")
        A("    s_barrier")
        A("L_nob1:")
        for t in range(kb,16): gu(t)
        A("    ; STAMP 3")
        A("    s_cbranch_scc0 L_gudone")
        A("    s_barrier")
        for l in dl: A(l)
        A("L_gudone:")
    else:
        issued=0
        for t in range(16):
            D = D1 if t%2==0 else D2
            A(f"    s_waitcnt vmcnt({15-t+issued})")
            A(f"    v_mfma_f32_16x16x32_bf16 v[{D}:{D+3}], v[{AX+4*(t>>1)}:{AX+4*(t>>1)+3}], v[{GD+4*t}:{GD+4*t+3}], v[{D}:{D+3}]")
            if t>=t0 and (t-t0)%step==0 and issued<ne and t<15:
                A(dl[issued]); issued+=1
        ne=issued
        A("    ; STAMP 3")
        A("    s_nop 0")
    def ldswrite(Da, Db, off, nop):
        A("    s_mov_b32 exec_hi, 0")
        A(f"    s_nop {nop}")
        A(f"    ds_write_b128 v{LW}, v[{Da}:{Da+3}] offset:{off}")
        A("    s_not_b64 exec, exec")
        A(f"    ds_write_b128 v{LW}, v[{Db}:{Db+3}] offset:{off}")
        A("    s_mov_b64 exec, -1")
    def ldsreduce(off, mid=""):
        for i in range(8):
            A(f"    ds_read_b64 v[{8+2*i}:{9+2*i}], v{LR} offset:{off+512*i}")
        if mid: A(mid)
        A("    s_waitcnt lgkmcnt(4)")
        A("    v_pk_add_f32 v[8:9], v[8:9], v[10:11]")
        A("    v_pk_add_f32 v[12:13], v[12:13], v[14:15]")
        A("    s_waitcnt lgkmcnt(0)")
        A("    v_pk_add_f32 v[16:17], v[16:17], v[18:19]")
        A("    v_pk_add_f32 v[20:21], v[20:21], v[22:23]")
        A("    v_pk_add_f32 v[8:9], v[8:9], v[12:13]")
        A("    v_pk_add_f32 v[16:17], v[16:17], v[20:21]")
        A("    v_pk_add_f32 v[4:5], v[8:9], v[16:17]")
    ldswrite(D1, D2, 0, 4)
    if g2:
        gelu=f"""    v_add_f32_dpp v20, v{P}, v{P} row_ror:8 row_mask:0xf bank_mask:0x3
    v_add_f32_dpp v20, v{P+1}, v{P+1} row_ror:8 row_mask:0xf bank_mask:0xc
    v_add_f32_dpp v22, v{P+4}, v{P+4} row_ror:8 row_mask:0xf bank_mask:0x3
    v_add_f32_dpp v22, v{P+5}, v{P+5} row_ror:8 row_mask:0xf bank_mask:0xc
    v_add_f32_dpp v20, v20, v20 row_half_mirror row_mask:0xf bank_mask:0xf
    v_cvt_pk_bf16_f32 v21, 0, v20
    v_mul_f32 v24, v21, v21
    v_fmac_f32 v23, {f32hex(GELU_B)}, v24
    v_mul_f32 v24, v23, v21
    v_exp_f32 v24, v24
    v_add_f32_dpp v22, v22, v22 row_half_mirror row_mask:0xf bank_mask:0xf
    v_add_f32 v24, 1.0, v24
    v_rcp_f32 v24, v24
    v_cvt_pk_bf16_f32 v22, 0, v22    ; u
    v_mul_f32 v24, v24, v21          ; gelu
    v_cvt_pk_bf16_f32 v24, 0, v24
    v_mul_f32 v24, v24, v22          ; h"""
    else:
        gelu=f"""    v_add_f32_dpp v20, v{P}, v{P} row_ror:8 row_mask:0xf bank_mask:0x3
    v_add_f32_dpp v20, v{P+1}, v{P+1} row_ror:8 row_mask:0xf bank_mask:0xc
    v_add_f32_dpp v21, v{P+4}, v{P+4} row_ror:8 row_mask:0xf bank_mask:0x3
    v_add_f32_dpp v21, v{P+5}, v{P+5} row_ror:8 row_mask:0xf bank_mask:0xc
    v_add_f32_dpp v20, v20, v20 row_half_mirror row_mask:0xf bank_mask:0xf
    s_nop 0
    v_add_f32_dpp v21, v21, v21 row_half_mirror row_mask:0xf bank_mask:0xf
    v_cvt_pk_bf16_f32 v20, v20, v21
    v_lshlrev_b32 v21, 16, v20       ; g
    v_mul_f32 v24, v21, v21
    v_fmac_f32 v23, {f32hex(GELU_B)}, v24
    v_mul_f32 v24, v23, v21
    v_exp_f32 v24, v24
    v_and_b32 v22, 0xffff0000, v20   ; u
    v_add_f32 v24, 1.0, v24
    v_rcp_f32 v24, v24
    s_nop 0
    v_mul_f32 v24, v24, v21          ; gelu
    v_cvt_pk_bf16_f32 v24, v24, v24
    v_lshlrev_b32 v24, 16, v24
    v_mul_f32 v24, v24, v22          ; h"""
    A(f"""
    s_cmp_lg_u32 s29, 0
    s_waitcnt lgkmcnt(0)
    s_barrier
{"" if priv else "    s_cbranch_scc1 L_p1start"}
""")
    ldsreduce(0, "    s_add_u32 s24, s22, 2\n    s_or_b32 s24, s24, 1\n    s_add_u32 s25, s23, 0x9e3779b9\n    v_mov_b32 v6, s24\n    v_mov_b32 v7, s25")
    A(f"""
    global_store_dwordx4 v{H1S}, v[4:7], s[16:17] sc1
{f"    global_store_dwordx4 v198, v[4:7], s[16:17] sc1" if priv else ""}
    global_load_dword v{XI}, v{XIA}, s[14:15] sc1
    ; STAMP 4
L_p1start:
    s_barrier
""")
    if t0<0:
        A(f"    s_cmp_lt_u32 s29, {nearly}")
        A("    s_cbranch_scc1 L_ew")
        for l in dl: A(l)
        A(f"""
    s_branch L_eb
L_ew:
    s_cmp_eq_u32 s29, 0
    s_cbranch_scc1 L_eb
    s_waitcnt vmcnt({dclk})
L_eb:""")
    else:
        for l in dl[ne:]: A(l)
        if w0skip and not priv:
            A("    s_cmp_eq_u32 s29, 0")
            A("    s_cbranch_scc1 L_eb")
        A(f"    s_waitcnt vmcnt({dclk+(3 if priv else 0)})")
        A("L_eb:")
    A(f"""
    s_add_u32 s24, s22, 2
    s_or_b32 s24, s24, 1
    s_add_u32 s25, s23, 0x9e3779b9
    v_mov_b32 v23, {f32hex(GELU_A)}
{"    s_barrier" if pbar else ""}
{f"    s_sleep {first_sleep}" if first_sleep else ""}
    ; STAMP 2
L_poll1:
    global_load_dwordx4 v[{P}:{P+3}], v{H1L}, s[16:17] sc1
    global_load_dwordx4 v[{P+4}:{P+7}], v{H1L}, s[16:17] offset:1024 sc1
    s_mov_b32 s46, {inner}
L_chk1:
{f"    s_sleep {slp}" if slp else ""}
    v_cmp_eq_u64 vcc, s[24:25], v[{P+2}:{P+3}]
    v_cmp_eq_u64 s[30:31], s[24:25], v[{P+6}:{P+7}]
    s_and_b64 vcc, vcc, s[30:31]
    s_cmp_eq_u64 vcc, -1
    s_cbranch_scc1 L_done1
    s_sub_u32 s46, s46, 1
    s_cbranch_scc0 L_chk1
    s_sub_u32 s44, s44, 1
    s_cbranch_scc0 L_poll1
L_done1:
    ; STAMP 5
{gelu}
    s_nop 1
    v_mov_b32_dpp v25, v24 row_ror:8 row_mask:0xf bank_mask:0xf
    v_cvt_pk_bf16_f32 v24, v24, v25  ; (even, odd) in lanes with bit3=0
    s_nop 1
""")
    def bc(p): A(f"    v_mov_b32_dpp v{26+p}, v24 row_newbcast:{p} row_mask:0xf bank_mask:0xf")
    def pm(p):
        for d in range(4): A(f"    v_perm_b32 v{AX+4*p+d}, v{26+p}, v{26+p}, v{SEL+d}")
    def mf(t):
        D = E1 if t%2==0 else E2
        A(f"    v_mfma_f32_16x16x32_bf16 v[{D}:{D+3}], v[{AX+4*(t>>1)}:{AX+4*(t>>1)+3}], v[{DD+4*t}:{DD+4*t+3}], v[{D}:{D+3}]")
    bc(0); pm(0); bc(1); bc(2)
    mf(0); bc(3);
    A(f"    v_perm_b32 v{AX+4}, v27, v27, v{SEL}")
    mf(1)
    for d in range(1,4): A(f"    v_perm_b32 v{AX+4+d}, v27, v27, v{SEL+d}")
    A(f"    v_perm_b32 v{AX+8}, v28, v28, v{SEL}")
    A(f"    v_perm_b32 v{AX+9}, v28, v28, v{SEL+1}")
    mf(2)
    A(f"    v_perm_b32 v{AX+10}, v28, v28, v{SEL+2}")
    A(f"    v_perm_b32 v{AX+11}, v28, v28, v{SEL+3}")
    mf(3)
    A(f"    v_perm_b32 v{AX+12}, v29, v29, v{SEL}")
    A(f"    v_perm_b32 v{AX+13}, v29, v29, v{SEL+1}")
    mf(4)
    A(f"    v_perm_b32 v{AX+14}, v29, v29, v{SEL+2}")
    A(f"    v_perm_b32 v{AX+15}, v29, v29, v{SEL+3}")
    mf(5)
    A("    s_nop 0")
    mf(6); mf(7)
    ldswrite(E1, E2, 4096, 5)
    A(f"""
    s_cmp_lg_u32 s29, 0
    s_waitcnt lgkmcnt(0)
    s_barrier
    ; STAMP 6
    s_cbranch_scc1 L_end
""")
    ldsreduce(4096, f"    v_cmp_eq_u32 vcc, s45, v{XI}\n    s_cmp_eq_u64 vcc, -1")
    if fast:
        A(f"""
    s_cbranch_scc0 L_slowpub
    global_store_dwordx4 v{H2S}, v[4:7], s[16:17]
    ; STAMP 7
    s_branch L_end
L_slowpub:
""")
    Q=8
    if fin2:
        final=f"""    v_pk_add_f32 v[16:17], v[{Q}:{Q+1}], v[{Q+4}:{Q+5}]
    s_mov_b64 exec, -1
    s_nop 0
    v_permlane32_swap_b32 v16, v17
    v_add_f32 v16, v16, v17
    s_nop 1
    v_add_f32_dpp v16, v16, v16 row_ror:8 row_mask:0xf bank_mask:0xf
    s_nop 1
    v_add_f32_dpp v17, v16, v16 row_ror:4 row_mask:0xf bank_mask:0xf
    v_add_f32_dpp v16, v16, v16 row_ror:4 row_mask:0xf bank_mask:0xf
    s_nop 1
    v_permlane16_swap_b32 v16, v17
    s_mov_b64 exec, s[38:39]
    v_add_f32 v16, v16, v17
    v_cvt_pk_bf16_f32 v16, v16, v16
    global_store_short v4, v16, s[12:13] {outflag}"""
        outaddr="""    v_lshl_add_u32 v4, v2, 2, s27
    v_bfe_u32 v19, v0, 5, 1
    v_lshl_add_u32 v4, v19, 1, v4
    s_mov_b32 s38, 0xf
    s_mov_b32 s39, 0xf"""
    else:
        final=f"""    v_pk_add_f32 v[16:17], v[{Q}:{Q+1}], v[{Q+4}:{Q+5}]
    s_mov_b64 exec, -1
    s_nop 0
    v_permlane32_swap_b32 v16, v17
    s_nop 0
    v_add_f32 v16, v16, v17
    s_nop 1
    v_add_f32_dpp v16, v16, v16 row_ror:8 row_mask:0xf bank_mask:0xf
    s_nop 1
    v_add_f32_dpp v16, v16, v16 row_ror:4 row_mask:0xf bank_mask:0xf
    v_mov_b32 v17, v16
    s_nop 1
    v_permlane16_swap_b32 v16, v17
    s_nop 0
    v_add_f32 v16, v16, v17
    v_mov_b32 v17, v16
    s_nop 1
    v_permlane32_swap_b32 v16, v17
    s_mov_b64 exec, 0xf
    v_cvt_pk_bf16_f32 v16, v16, v17
    global_store_dword v4, v16, s[12:13] {outflag}"""
        outaddr="    v_lshl_add_u32 v4, v2, 2, s27"
    A(f"""
    global_store_dwordx4 v{H2S}, v[4:7], s[16:17] sc1
    s_branch L_end
{stub_end}
L_cons:
    s_mul_i32 s27, s19, {28*1024}
    s_lshl_b32 s28, s18, 8
    s_add_u32 s27, s27, s28
    s_lshl_b32 s28, s29, 6
    s_add_u32 s27, s27, s28
    s_add_u32 s27, s27, {HOP2}
    v_bfe_u32 v1, v0, 2, 4           ; pr
    v_and_b32 v2, 3, v0              ; gi
    v_lshlrev_b32 v3, 11, v1
    v_lshl_add_u32 v3, v2, 4, v3
    v_add_u32 v3, s27, v3
    s_lshl_b32 s27, s19, 8
    s_lshl_b32 s28, s18, 6
    s_add_u32 s27, s27, s28
    s_lshl_b32 s28, s29, 4
    s_add_u32 s27, s27, s28
{outaddr}
    v_mov_b32 v16, 0
    v_mov_b32 v17, 0
    v_mov_b32 v18, 0
    v_and_b32 v7, 31, v0
    v_lshlrev_b32 v7, 2, v7
    s_mov_b32 s44, 0x40000
    s_waitcnt lgkmcnt(0)
    s_add_u32 s24, s22, 2
    s_or_b32 s24, s24, 1
    s_add_u32 s25, s23, 0x9e3779b9
    s_barrier
    s_cmp_lg_u32 s29, 0
    s_cbranch_scc1 L_cpoll
    s_mov_b64 exec, 1
    global_store_dword v5, v6, s[14:15] offset:128 sc1
    s_mov_b64 exec, -1
L_cpoll:
    ; STAMP 1
    s_mov_b32 exec_hi, 0x00ffffff
L_slowpoll:
    global_load_dwordx4 v[{Q}:{Q+3}], v3, s[16:17] sc1
    global_load_dwordx4 v[{Q+4}:{Q+7}], v3, s[16:17] offset:1024 sc1
    s_waitcnt vmcnt(0)
    v_cmp_eq_u64 vcc, s[24:25], v[{Q+2}:{Q+3}]
    v_cmp_eq_u64 s[30:31], s[24:25], v[{Q+6}:{Q+7}]
    s_or_b64 vcc, vcc, s[30:31]
    s_cbranch_scc1 L_fastp
    s_sleep {slow_sleep}
    s_sub_u32 s44, s44, 1
    s_cbranch_scc0 L_slowpoll
L_fastp:
    s_lshl_b32 s36, s29, 8
    s_add_u32 s36, s36, s2
    s_cmp_lg_u32 s36, 224
    s_cbranch_scc1 L_poll2
    global_load_dword v18, v7, s[14:15] offset:128 sc1
L_poll2:
    global_load_dwordx4 v[{Q}:{Q+3}], v3, s[16:17] sc1
    global_load_dwordx4 v[{Q+4}:{Q+7}], v3, s[16:17] offset:1024 sc1
    s_mov_b32 s46, {inner2}
L_chk2:
    v_cmp_eq_u64 vcc, s[24:25], v[{Q+2}:{Q+3}]
    v_cmp_eq_u64 s[30:31], s[24:25], v[{Q+6}:{Q+7}]
    s_and_b64 vcc, vcc, s[30:31]
    s_cmp_eq_u64 vcc, exec
    s_cbranch_scc1 L_done2
    s_sub_u32 s46, s46, 1
    s_cbranch_scc0 L_chk2
    s_sub_u32 s44, s44, 1
    s_cbranch_scc0 L_poll2
L_done2:
    ; STAMP 8
{final}
    ; DIAG_SPIN
    s_cmp_lg_u32 s36, 224
    s_cbranch_scc1 L_end
    ; epoch update once every consumer has read the old one
    s_mov_b64 exec, 0xffffffff
    s_mov_b32 exec_hi, 0
L_xall:
    v_cmp_ne_u32 vcc, 0, v18
    s_cmp_eq_u64 vcc, exec
    s_cbranch_scc1 L_xok
    global_load_dword v18, v7, s[14:15] offset:128 sc1
    s_waitcnt vmcnt(0)
    s_sub_u32 s44, s44, 1
    s_cbranch_scc0 L_xall
L_xok:
    v_mov_b32 v6, s24
    v_mov_b32 v7, s25
    v_mov_b32 v5, {EPOCH}
    s_mov_b64 exec, 1
    global_store_dwordx2 v5, v[6:7], s[16:17]
L_end:
{"    s_waitcnt vmcnt(0)" if stamps else ""}
    ; STAMP 9
L_exit:
    s_endpgm
""")
    A('.section .rodata,"a"'); A(".p2align 6"); A(kdesc(N1, NV, 48))
    t=stampify("\n".join(o), stamps)
    if stamps:
        for a,b in (("v150","v250"),("v152","v252"),("v153","v253"),("v155","v255"),("152:153","252:253")):
            pass
    return t

if __name__=="__main__":
    out=sys.argv[1]
    kw={}
    for a in sys.argv[2:]:
        k,v=a.split("=")
        if k in ("stamps","fast","pbar","w0skip","tlbd","fin2","priv","g2"): kw[k]=(v=="1")
        elif k in ("align","inner","slp","inner2","pfsz","slow_sleep","nearly","kb","dclk","first_sleep","split","pre","t0","ne","step","lay","pord"): kw[k]=int(v)
        elif k=="ib": kw[k]=tuple(int(x) for x in v.split(","))
        else: kw[k]=v.replace("_"," ").replace("none","")
    open(out,"w").write(gen(**kw))
```

```python
from common import *
from stampify import stampify
import sys, re

EPOCH = 0x0
HOP2 = 0x1000
HOP1 = 0x40000

def gen(stamps=False, nt="", ntd=None, fast=True, align=12, inner=4, slp=1, outflag="", inner2=0, pfsz=0xb80,
        slow_sleep=4, nearly=2, kb=0, dclk=0, first_sleep=0, split=0, pre=0, t0=-1, ne=4, step=1, pbar=True, w0skip=True, tlbd=False, fin2=False, ib=(), priv=False, pfnt="", lay=0, pord=0, g2=False, hv=False):
    if ntd is None: ntd=nt
    o=[]; A=o.append
    N1="standalone__geglu_ffn__decode_kernel"
    A(HEADER.rstrip())
    A(f"; @launch grid=(256,1,1) block=(256,1,1) lds=8192")
    A('.amdgcn_target "amdgcn-amd-amdhsa--gfx950"')
    A(".text")
    A(f".globl {N1}\n.p2align {align}\n.type {N1},@function\n{N1}:")
    GA=8
    XV=24
    AX=32
    GD=64
    DD=128
    D1=160; D2=164; E1=168; E2=172
    P=176
    SEL=184
    DA,DB,LW,LR,H1S,H1L,H2S,XIA,XI,PF = 188,189,190,191,192,193,194,195,196,197
    NV=200
    if priv:
        h1s=f"""    s_lshl_b32 s27, s18, 16
    s_lshl_b32 s28, s19, 10
    s_add_u32 s27, s27, s28
    s_lshl_b32 s28, s29, 14
    s_add_u32 s27, s27, s28
    s_add_u32 s27, s27, {HOP1}
    v_lshl_add_u32 v{H1S}, v{LR}, 1, s27
    v_add_u32 v198, 8192, v{H1S}"""
    else:
        h1s=f"""    s_lshl_b32 s27, s2, 10
    s_add_u32 s27, s27, {HOP1}
    v_lshl_add_u32 v{H1S}, v{LR}, 1, s27"""
    pre1=pre2=""
    tlb=""
    if tlbd:
        tlb="""    v_and_b32 v8, 7, v0
    v_mul_u32_u24 v8, 0xfffc0, v8
    global_load_dword v9, v8, s[10:11]"""
    if pre:
        if hv:
            head=f"""    s_lshr_b32 s26, s19, 1
    s_lshl_b32 s27, s26, 3
    s_add_u32 s27, s27, s18
    s_lshl_b32 s27, s27, 2
    s_add_u32 s27, s27, s29          ; 32kc + 4k + w
    s_mul_i32 s27, s27, {8*7168}
    s_add_u32 s27, s27, {(128+4)*7168+2048}"""
        else:
            head=f"""    s_lshr_b32 s26, s19, 1
    s_lshl_b32 s27, s26, 2
    s_add_u32 s27, s27, s18
    s_lshl_b32 s27, s27, 2
    s_add_u32 s27, s27, s29          ; 16kc + 4k + w
    s_mul_i32 s27, s27, {16*7168}
    s_add_u32 s27, s27, {(12 if pord==0 else 16-4*pre)*7168+2048}"""
        pre1=head+f"""
    v_bfe_u32 v2, v0, 4, 2
    v_mul_u32_u24 v2, 7168, v2
    v_and_b32 v1, 15, v0
    v_lshl_add_u32 v2, v1, 4, v2
    s_bitcmp1_b32 s19, 0"""
        L=["    s_cselect_b64 s[20:21], s[8:9], s[6:7]",
           "    s_sub_u32 s28, 0x100, s20",
           "    s_and_b32 s28, s28, 0x300",
           "    s_add_u32 s27, s27, s28",
           "    v_add_u32 v2, s27, v2"]
        for n in range(pre):
            L.append("    v_add_u32 v3, 4096, v2")
            for i in range(7):
                L.append(f"    global_load_dwordx4 v[32:35], v{2 if i<4 else 3}, s[20:21] offset:{((i&3)-2)*1024} {pfnt}")
            if n+1<pre: L.append(f"    v_subrev_u32 v2, {4*7168}, v2" if pord==0 else f"    v_add_u32 v2, {4*7168}, v2")
        pre2="\n".join(L)
    stub_body=f"""    ; consumer stub: publish XCC id as early as possible
    s_sub_u32 s18, s18, 28
    s_lshl_b32 s27, s19, 4
    s_lshl_b32 s28, s18, 2
    s_add_u32 s27, s27, s28
    v_mov_b32 v5, s27
    v_mov_b32 v6, s45
{pre1}
    v_cmp_eq_u32 vcc, 0, v0
    s_waitcnt lgkmcnt(0)
    s_load_dwordx2 s[22:23], s[16:17], {EPOCH}
    s_cbranch_vccz L_noxi
    s_mov_b64 exec, 1
    global_store_dword v5, v6, s[14:15] sc1
    s_mov_b64 exec, -1
L_noxi:
{tlb}
{pre2}
    s_branch L_cons"""
    if lay==0:
        stub_top="    s_cmp_lt_u32 s18, 28\n    s_cbranch_scc1 L_prod\n"+stub_body; stub_end=""
    else:
        stub_top="    s_cmp_lt_u32 s18, 28\n    s_cbranch_scc0 L_stub"; stub_end="L_stub:\n"+stub_body.replace("    s_branch L_cons","")
    if split==0:
        gcol="    s_lshl_b32 s28, s18, 8"; gcol2=""
        drow="    s_lshl_b32 s27, s18, 18"; drow2=""
    else:
        if split==512:
            gcol="    s_and_b32 s31, s18, 0xfc\n    s_add_u32 s31, s31, s18\n    s_lshl_b32 s28, s31, 7"
        else:
            gcol="    s_and_b32 s31, s18, 0xfe\n    s_add_u32 s31, s31, s18\n    s_lshl_b32 s28, s31, 7"
        gcol2=f"    v_and_b32 v5, 8, v0\n    v_mul_u32_u24 v5, {(split-128)//8}, v5\n    v_add_u32 v4, v5, v4"
        drow="    s_lshl_b32 s27, s31, 17"
        drow2=f"    v_and_b32 v5, 0x80, v0\n    v_mul_u32_u24 v5, {(split//128-1)*64*2048//128}, v5\n    v_add_u32 v4, v5, v4"
    A(f"""
    ; STAMP 0
    s_load_dwordx8 s[4:11], s[0:1], 0
    s_load_dwordx4 s[12:15], s[0:1], 32
    s_load_dwordx2 s[16:17], s[0:1], 48
    s_cmp_ge_u32 s2, 256
    s_cbranch_scc1 L_exit
    s_getpc_b64 s[20:21]
    v_lshlrev_b32 v1, 7, v0
    v_cmp_gt_u32 vcc, {pfsz}, v1
    s_and_saveexec_b64 s[22:23], vcc
    s_cbranch_execz L_nopf
    global_load_dword v{PF}, v1, s[20:21]
L_nopf:
    s_mov_b64 exec, -1
    v_lshrrev_b32 v7, 6, v0          ; w
    s_lshr_b32 s18, s2, 3            ; r
    s_and_b32 s19, s2, 7             ; j
    v_readfirstlane_b32 s29, v7
    s_getreg_b32 s45, hwreg(HW_REG_XCC_ID, 0, 4)
    s_add_u32 s45, s45, 1
{stub_top}
L_prod:
    v_and_b32 v1, 15, v0             ; c
    v_lshrrev_b32 v2, 4, v0          ; 4w+q (0..15)
    s_lshr_b32 s26, s19, 1           ; kc
    s_lshl_b32 s27, s26, 9
    v_lshl_add_u32 v3, v2, {4 if hv else 5}, s27
    s_mul_i32 s27, s26, {256*7168}
{gcol}
    s_add_u32 s27, s27, s28
    v_mul_u32_u24 v4, {(8 if hv else 16)*7168}, v2
    v_lshl_add_u32 v4, v1, 4, v4
{gcol2}
    v_add_u32 v{GA}, s27, v4
""")
    if lay: A("    s_movk_i32 s28, 7168")
    for t in range(1,16):
        if lay: A(f"    v_add_u32 v{GA+t}, s28, v{GA+t-1}")
        else: A(f"    v_add_u32 v{GA+t}, {7168*(t if (t<8 or not hv) else t+120)}, v{GA}")
    A(f"""
    s_bitcmp1_b32 s19, 0
    s_waitcnt lgkmcnt(0)
    ; STAMP 1
    s_cselect_b64 s[20:21], s[8:9], s[6:7]
    global_load_dwordx4 v[{XV}:{XV+3}], v3, s[4:5]
    global_load_dwordx4 v[{XV+4}:{XV+7}], v3, s[4:5] offset:{256 if hv else 16}
""")
    for t in range(16):
        if t in ib: A("    s_barrier")
        A(f"    global_load_dwordx4 v[{GD+4*t}:{GD+4*t+3}], v{GA+t}, s[20:21] {nt}")
    A(f"""
    s_load_dwordx2 s[22:23], s[16:17], {EPOCH}
    ; selectors
    v_bfe_u32 v8, v0, 3, 1           ; hi
    v_mul_u32_u24 v8, 0x202, v8
    v_add_u32 v8, 0x100, v8
    v_lshlrev_b32 v9, 16, v8
    v_or_b32 v9, 0x0c0c, v9
    v_or_b32 v8, 0x0c0c0000, v8
    v_and_b32 v10, 1, v0
    v_cmp_eq_u32 vcc, 1, v10
    v_bfe_u32 v10, v0, 1, 2          ; mm>>1
    v_mov_b32 v11, 0x0c0c0c0c
    v_cndmask_b32 v8, v8, v9, vcc
""")
    for d in range(4):
        A(f"    v_cmp_eq_u32 vcc, {d}, v10")
        A("    s_nop 1")
        A(f"    v_cndmask_b32 v{SEL+d}, v11, v8, vcc")
    A(f"""
    v_and_b32 v{LR}, 63, v0
    v_lshlrev_b32 v{LR}, 3, v{LR}
    s_mul_i32 s27, s19, 28
    s_add_u32 s28, s27, s18
    s_lshl_b32 s28, s28, 10
    s_add_u32 s28, s28, {HOP2}
    v_lshl_add_u32 v{H2S}, v{LR}, 1, s28
    s_lshl_b32 s30, s19, 4
    v_and_b32 v9, 3, v0
    v_lshl_add_u32 v{XIA}, v9, 2, s30
{h1s}
    s_lshl_b32 s27, {"s2" if priv else "s18"}, 13
    s_add_u32 s27, s27, {HOP1}
    v_lshl_add_u32 v{H1L}, v2, 6, s27
    v_bfe_u32 v10, v0, 2, 2          ; kc
    v_lshl_add_u32 v{H1L}, v10, 11, v{H1L}
    v_bfe_i32 v10, v0, 2, 1
    v_xor_b32 v9, v9, v10
    v_and_b32 v9, 3, v9              ; gl'
    v_lshl_add_u32 v{H1L}, v9, 4, v{H1L}
    v_lshrrev_b32 v9, 5, v0
    v_lshlrev_b32 v{LW}, 9, v9
    v_lshl_add_u32 v{LW}, v1, 5, v{LW}
    v_and_b32 v9, 16, v0
    v_add_u32 v{LW}, v9, v{LW}
{drow}
    s_lshl_b32 s28, s19, 8
    s_add_u32 s27, s27, s28
    s_add_u32 s27, s27, 4096
    v_lshlrev_b32 v4, 14, v2
    v_lshl_add_u32 v4, v1, 4, v4
{drow2}
    v_add_u32 v{DA}, s27, v4
    v_add_u32 v{DB}, 8192, v{DA}
    s_mov_b32 s44, 0x40000
    v_mov_b32 v{P+2}, 0
    v_mov_b32 v{P+6}, 0
""")
    for i in range(16):
        A(f"    v_mov_b32 v{D1+i}, 0")
    dl=[f"    global_load_dwordx4 v[{DD+4*t}:{DD+4*t+3}], v{DA if t<4 else DB}, s[10:11] offset:{((t&3)-2)*2048} {ntd}" for t in range(8)]
    A("    s_waitcnt vmcnt(16)")
    for p in range(8):
        for d in range(4):
            A(f"    v_perm_b32 v{AX+4*p+d}, v{XV+p}, v{XV+p}, v{SEL+d}")
    def gu(t):
        D = D1 if t%2==0 else D2
        A(f"    s_waitcnt vmcnt({15-t})")
        A(f"    v_mfma_f32_16x16x32_bf16 v[{D}:{D+3}], v[{AX+4*(t>>1)}:{AX+4*(t>>1)+3}], v[{GD+4*t}:{GD+4*t+3}], v[{D}:{D+3}]")
    if t0<0:
        for t in range(kb): gu(t)
        A(f"    s_cmp_lt_u32 s29, {nearly}")
        A("    s_cbranch_scc1 L_nob1")
        A("    s_barrier")
        A("L_nob1:")
        for t in range(kb,16): gu(t)
        A("    ; STAMP 3")
        A("    s_cbranch_scc0 L_gudone")
        A("    s_barrier")
        for l in dl: A(l)
        A("L_gudone:")
    else:
        issued=0
        for t in range(16):
            D = D1 if t%2==0 else D2
            A(f"    s_waitcnt vmcnt({15-t+issued})")
            A(f"    v_mfma_f32_16x16x32_bf16 v[{D}:{D+3}], v[{AX+4*(t>>1)}:{AX+4*(t>>1)+3}], v[{GD+4*t}:{GD+4*t+3}], v[{D}:{D+3}]")
            if t>=t0 and (t-t0)%step==0 and issued<ne and t<15:
                A(dl[issued]); issued+=1
        ne=issued
        A("    ; STAMP 3")
        A("    s_nop 0")
    def ldswrite(Da, Db, off, nop):
        A("    s_mov_b32 exec_hi, 0")
        A(f"    s_nop {nop}")
        A(f"    ds_write_b128 v{LW}, v[{Da}:{Da+3}] offset:{off}")
        A("    s_not_b64 exec, exec")
        A(f"    ds_write_b128 v{LW}, v[{Db}:{Db+3}] offset:{off}")
        A("    s_mov_b64 exec, -1")
    def ldsreduce(off, mid=""):
        for i in range(8):
            A(f"    ds_read_b64 v[{8+2*i}:{9+2*i}], v{LR} offset:{off+512*i}")
        if mid: A(mid)
        A("    s_waitcnt lgkmcnt(4)")
        A("    v_pk_add_f32 v[8:9], v[8:9], v[10:11]")
        A("    v_pk_add_f32 v[12:13], v[12:13], v[14:15]")
        A("    s_waitcnt lgkmcnt(0)")
        A("    v_pk_add_f32 v[16:17], v[16:17], v[18:19]")
        A("    v_pk_add_f32 v[20:21], v[20:21], v[22:23]")
        A("    v_pk_add_f32 v[8:9], v[8:9], v[12:13]")
        A("    v_pk_add_f32 v[16:17], v[16:17], v[20:21]")
        A("    v_pk_add_f32 v[4:5], v[8:9], v[16:17]")
    ldswrite(D1, D2, 0, 4)
    if g2:
        gelu=f"""    v_add_f32_dpp v20, v{P}, v{P} row_ror:8 row_mask:0xf bank_mask:0x3
    v_add_f32_dpp v20, v{P+1}, v{P+1} row_ror:8 row_mask:0xf bank_mask:0xc
    v_add_f32_dpp v22, v{P+4}, v{P+4} row_ror:8 row_mask:0xf bank_mask:0x3
    v_add_f32_dpp v22, v{P+5}, v{P+5} row_ror:8 row_mask:0xf bank_mask:0xc
    v_add_f32_dpp v20, v20, v20 row_half_mirror row_mask:0xf bank_mask:0xf
    v_cvt_pk_bf16_f32 v21, 0, v20
    v_mul_f32 v24, v21, v21
    v_fmac_f32 v23, {f32hex(GELU_B)}, v24
    v_mul_f32 v24, v23, v21
    v_exp_f32 v24, v24
    v_add_f32_dpp v22, v22, v22 row_half_mirror row_mask:0xf bank_mask:0xf
    v_add_f32 v24, 1.0, v24
    v_rcp_f32 v24, v24
    v_cvt_pk_bf16_f32 v22, 0, v22    ; u
    v_mul_f32 v24, v24, v21          ; gelu
    v_cvt_pk_bf16_f32 v24, 0, v24
    v_mul_f32 v24, v24, v22          ; h"""
    else:
        gelu=f"""    v_add_f32_dpp v20, v{P}, v{P} row_ror:8 row_mask:0xf bank_mask:0x3
    v_add_f32_dpp v20, v{P+1}, v{P+1} row_ror:8 row_mask:0xf bank_mask:0xc
    v_add_f32_dpp v21, v{P+4}, v{P+4} row_ror:8 row_mask:0xf bank_mask:0x3
    v_add_f32_dpp v21, v{P+5}, v{P+5} row_ror:8 row_mask:0xf bank_mask:0xc
    v_add_f32_dpp v20, v20, v20 row_half_mirror row_mask:0xf bank_mask:0xf
    s_nop 0
    v_add_f32_dpp v21, v21, v21 row_half_mirror row_mask:0xf bank_mask:0xf
    v_cvt_pk_bf16_f32 v20, v20, v21
    v_lshlrev_b32 v21, 16, v20       ; g
    v_mul_f32 v24, v21, v21
    v_fmac_f32 v23, {f32hex(GELU_B)}, v24
    v_mul_f32 v24, v23, v21
    v_exp_f32 v24, v24
    v_and_b32 v22, 0xffff0000, v20   ; u
    v_add_f32 v24, 1.0, v24
    v_rcp_f32 v24, v24
    s_nop 0
    v_mul_f32 v24, v24, v21          ; gelu
    v_cvt_pk_bf16_f32 v24, v24, v24
    v_lshlrev_b32 v24, 16, v24
    v_mul_f32 v24, v24, v22          ; h"""
    A(f"""
    s_cmp_lg_u32 s29, 0
    s_waitcnt lgkmcnt(0)
    s_barrier
{"" if priv else "    s_cbranch_scc1 L_p1start"}
""")
    ldsreduce(0, "    s_add_u32 s24, s22, 2\n    s_or_b32 s24, s24, 1\n    s_add_u32 s25, s23, 0x9e3779b9\n    v_mov_b32 v6, s24\n    v_mov_b32 v7, s25")
    A(f"""
    global_store_dwordx4 v{H1S}, v[4:7], s[16:17] sc1
{f"    global_store_dwordx4 v198, v[4:7], s[16:17] sc1" if priv else ""}
    global_load_dword v{XI}, v{XIA}, s[14:15] sc1
    ; STAMP 4
L_p1start:
    s_barrier
""")
    if t0<0:
        A(f"    s_cmp_lt_u32 s29, {nearly}")
        A("    s_cbranch_scc1 L_ew")
        for l in dl: A(l)
        A(f"""
    s_branch L_eb
L_ew:
    s_cmp_eq_u32 s29, 0
    s_cbranch_scc1 L_eb
    s_waitcnt vmcnt({dclk})
L_eb:""")
    else:
        for l in dl[ne:]: A(l)
        if w0skip and not priv:
            A("    s_cmp_eq_u32 s29, 0")
            A("    s_cbranch_scc1 L_eb")
        A(f"    s_waitcnt vmcnt({dclk+(3 if priv else 0)})")
        A("L_eb:")
    A(f"""
    s_add_u32 s24, s22, 2
    s_or_b32 s24, s24, 1
    s_add_u32 s25, s23, 0x9e3779b9
    v_mov_b32 v23, {f32hex(GELU_A)}
{"    s_barrier" if pbar else ""}
{f"    s_sleep {first_sleep}" if first_sleep else ""}
    ; STAMP 2
L_poll1:
    global_load_dwordx4 v[{P}:{P+3}], v{H1L}, s[16:17] sc1
    global_load_dwordx4 v[{P+4}:{P+7}], v{H1L}, s[16:17] offset:1024 sc1
    s_mov_b32 s46, {inner}
L_chk1:
{f"    s_sleep {slp}" if slp else ""}
    v_cmp_eq_u64 vcc, s[24:25], v[{P+2}:{P+3}]
    v_cmp_eq_u64 s[30:31], s[24:25], v[{P+6}:{P+7}]
    s_and_b64 vcc, vcc, s[30:31]
    s_cmp_eq_u64 vcc, -1
    s_cbranch_scc1 L_done1
    s_sub_u32 s46, s46, 1
    s_cbranch_scc0 L_chk1
    s_sub_u32 s44, s44, 1
    s_cbranch_scc0 L_poll1
L_done1:
    ; STAMP 5
{gelu}
    s_nop 1
    v_mov_b32_dpp v25, v24 row_ror:8 row_mask:0xf bank_mask:0xf
    v_cvt_pk_bf16_f32 v24, v24, v25  ; (even, odd) in lanes with bit3=0
    s_nop 1
""")
    def bc(p): A(f"    v_mov_b32_dpp v{26+p}, v24 row_newbcast:{p} row_mask:0xf bank_mask:0xf")
    def pm(p):
        for d in range(4): A(f"    v_perm_b32 v{AX+4*p+d}, v{26+p}, v{26+p}, v{SEL+d}")
    def mf(t):
        D = E1 if t%2==0 else E2
        A(f"    v_mfma_f32_16x16x32_bf16 v[{D}:{D+3}], v[{AX+4*(t>>1)}:{AX+4*(t>>1)+3}], v[{DD+4*t}:{DD+4*t+3}], v[{D}:{D+3}]")
    bc(0); pm(0); bc(1); bc(2)
    mf(0); bc(3);
    A(f"    v_perm_b32 v{AX+4}, v27, v27, v{SEL}")
    mf(1)
    for d in range(1,4): A(f"    v_perm_b32 v{AX+4+d}, v27, v27, v{SEL+d}")
    A(f"    v_perm_b32 v{AX+8}, v28, v28, v{SEL}")
    A(f"    v_perm_b32 v{AX+9}, v28, v28, v{SEL+1}")
    mf(2)
    A(f"    v_perm_b32 v{AX+10}, v28, v28, v{SEL+2}")
    A(f"    v_perm_b32 v{AX+11}, v28, v28, v{SEL+3}")
    mf(3)
    A(f"    v_perm_b32 v{AX+12}, v29, v29, v{SEL}")
    A(f"    v_perm_b32 v{AX+13}, v29, v29, v{SEL+1}")
    mf(4)
    A(f"    v_perm_b32 v{AX+14}, v29, v29, v{SEL+2}")
    A(f"    v_perm_b32 v{AX+15}, v29, v29, v{SEL+3}")
    mf(5)
    A("    s_nop 0")
    mf(6); mf(7)
    ldswrite(E1, E2, 4096, 5)
    A(f"""
    s_cmp_lg_u32 s29, 0
    s_waitcnt lgkmcnt(0)
    s_barrier
    ; STAMP 6
    s_cbranch_scc1 L_end
""")
    ldsreduce(4096, f"    v_cmp_eq_u32 vcc, s45, v{XI}\n    s_cmp_eq_u64 vcc, -1")
    if fast:
        A(f"""
    s_cbranch_scc0 L_slowpub
    global_store_dwordx4 v{H2S}, v[4:7], s[16:17]
    ; STAMP 7
    s_branch L_end
L_slowpub:
""")
    Q=8
    if fin2:
        final=f"""    v_pk_add_f32 v[16:17], v[{Q}:{Q+1}], v[{Q+4}:{Q+5}]
    s_mov_b64 exec, -1
    s_nop 0
    v_permlane32_swap_b32 v16, v17
    v_add_f32 v16, v16, v17
    s_nop 1
    v_add_f32_dpp v16, v16, v16 row_ror:8 row_mask:0xf bank_mask:0xf
    s_nop 1
    v_add_f32_dpp v17, v16, v16 row_ror:4 row_mask:0xf bank_mask:0xf
    v_add_f32_dpp v16, v16, v16 row_ror:4 row_mask:0xf bank_mask:0xf
    s_nop 1
    v_permlane16_swap_b32 v16, v17
    s_mov_b64 exec, s[38:39]
    v_add_f32 v16, v16, v17
    v_cvt_pk_bf16_f32 v16, v16, v16
    global_store_short v4, v16, s[12:13] {outflag}"""
        outaddr="""    v_lshl_add_u32 v4, v2, 2, s27
    v_bfe_u32 v19, v0, 5, 1
    v_lshl_add_u32 v4, v19, 1, v4
    s_mov_b32 s38, 0xf
    s_mov_b32 s39, 0xf"""
    else:
        final=f"""    v_pk_add_f32 v[16:17], v[{Q}:{Q+1}], v[{Q+4}:{Q+5}]
    s_mov_b64 exec, -1
    s_nop 0
    v_permlane32_swap_b32 v16, v17
    s_nop 0
    v_add_f32 v16, v16, v17
    s_nop 1
    v_add_f32_dpp v16, v16, v16 row_ror:8 row_mask:0xf bank_mask:0xf
    s_nop 1
    v_add_f32_dpp v16, v16, v16 row_ror:4 row_mask:0xf bank_mask:0xf
    v_mov_b32 v17, v16
    s_nop 1
    v_permlane16_swap_b32 v16, v17
    s_nop 0
    v_add_f32 v16, v16, v17
    v_mov_b32 v17, v16
    s_nop 1
    v_permlane32_swap_b32 v16, v17
    s_mov_b64 exec, 0xf
    v_cvt_pk_bf16_f32 v16, v16, v17
    global_store_dword v4, v16, s[12:13] {outflag}"""
        outaddr="    v_lshl_add_u32 v4, v2, 2, s27"
    A(f"""
    global_store_dwordx4 v{H2S}, v[4:7], s[16:17] sc1
    s_branch L_end
{stub_end}
L_cons:
    s_mul_i32 s27, s19, {28*1024}
    s_lshl_b32 s28, s18, 8
    s_add_u32 s27, s27, s28
    s_lshl_b32 s28, s29, 6
    s_add_u32 s27, s27, s28
    s_add_u32 s27, s27, {HOP2}
    v_bfe_u32 v1, v0, 2, 4           ; pr
    v_and_b32 v2, 3, v0              ; gi
    v_lshlrev_b32 v3, 11, v1
    v_lshl_add_u32 v3, v2, 4, v3
    v_add_u32 v3, s27, v3
    s_lshl_b32 s27, s19, 8
    s_lshl_b32 s28, s18, 6
    s_add_u32 s27, s27, s28
    s_lshl_b32 s28, s29, 4
    s_add_u32 s27, s27, s28
{outaddr}
    v_mov_b32 v16, 0
    v_mov_b32 v17, 0
    v_mov_b32 v18, 0
    v_and_b32 v7, 31, v0
    v_lshlrev_b32 v7, 2, v7
    s_mov_b32 s44, 0x40000
    s_waitcnt lgkmcnt(0)
    s_add_u32 s24, s22, 2
    s_or_b32 s24, s24, 1
    s_add_u32 s25, s23, 0x9e3779b9
    s_barrier
    s_cmp_lg_u32 s29, 0
    s_cbranch_scc1 L_cpoll
    s_mov_b64 exec, 1
    global_store_dword v5, v6, s[14:15] offset:128 sc1
    s_mov_b64 exec, -1
L_cpoll:
    ; STAMP 1
    s_mov_b32 exec_hi, 0x00ffffff
L_slowpoll:
    global_load_dwordx4 v[{Q}:{Q+3}], v3, s[16:17] sc1
    global_load_dwordx4 v[{Q+4}:{Q+7}], v3, s[16:17] offset:1024 sc1
    s_waitcnt vmcnt(0)
    v_cmp_eq_u64 vcc, s[24:25], v[{Q+2}:{Q+3}]
    v_cmp_eq_u64 s[30:31], s[24:25], v[{Q+6}:{Q+7}]
    s_or_b64 vcc, vcc, s[30:31]
    s_cbranch_scc1 L_fastp
    s_sleep {slow_sleep}
    s_sub_u32 s44, s44, 1
    s_cbranch_scc0 L_slowpoll
L_fastp:
    s_lshl_b32 s36, s29, 8
    s_add_u32 s36, s36, s2
    s_cmp_lg_u32 s36, 224
    s_cbranch_scc1 L_poll2
    global_load_dword v18, v7, s[14:15] offset:128 sc1
L_poll2:
    global_load_dwordx4 v[{Q}:{Q+3}], v3, s[16:17] sc1
    global_load_dwordx4 v[{Q+4}:{Q+7}], v3, s[16:17] offset:1024 sc1
    s_mov_b32 s46, {inner2}
L_chk2:
    v_cmp_eq_u64 vcc, s[24:25], v[{Q+2}:{Q+3}]
    v_cmp_eq_u64 s[30:31], s[24:25], v[{Q+6}:{Q+7}]
    s_and_b64 vcc, vcc, s[30:31]
    s_cmp_eq_u64 vcc, exec
    s_cbranch_scc1 L_done2
    s_sub_u32 s46, s46, 1
    s_cbranch_scc0 L_chk2
    s_sub_u32 s44, s44, 1
    s_cbranch_scc0 L_poll2
L_done2:
    ; STAMP 8
{final}
    ; DIAG_SPIN
    s_cmp_lg_u32 s36, 224
    s_cbranch_scc1 L_end
    ; epoch update once every consumer has read the old one
    s_mov_b64 exec, 0xffffffff
    s_mov_b32 exec_hi, 0
L_xall:
    v_cmp_ne_u32 vcc, 0, v18
    s_cmp_eq_u64 vcc, exec
    s_cbranch_scc1 L_xok
    global_load_dword v18, v7, s[14:15] offset:128 sc1
    s_waitcnt vmcnt(0)
    s_sub_u32 s44, s44, 1
    s_cbranch_scc0 L_xall
L_xok:
    v_mov_b32 v6, s24
    v_mov_b32 v7, s25
    v_mov_b32 v5, {EPOCH}
    s_mov_b64 exec, 1
    global_store_dwordx2 v5, v[6:7], s[16:17]
L_end:
{"    s_waitcnt vmcnt(0)" if stamps else ""}
    ; STAMP 9
L_exit:
    s_endpgm
""")
    A('.section .rodata,"a"'); A(".p2align 6"); A(kdesc(N1, NV, 48))
    t=stampify("\n".join(o), stamps)
    if stamps:
        for a,b in (("v150","v250"),("v152","v252"),("v153","v253"),("v155","v255"),("152:153","252:253")):
            pass
    return t

if __name__=="__main__":
    out=sys.argv[1]
    kw={}
    for a in sys.argv[2:]:
        k,v=a.split("=")
        if k in ("stamps","fast","pbar","w0skip","tlbd","fin2","priv","g2","hv"): kw[k]=(v=="1")
        elif k in ("align","inner","slp","inner2","pfsz","slow_sleep","nearly","kb","dclk","first_sleep","split","pre","t0","ne","step","lay","pord"): kw[k]=int(v)
        elif k=="ib": kw[k]=tuple(int(x) for x in v.split(","))
        else: kw[k]=v.replace("_"," ").replace("none","")
    open(out,"w").write(gen(**kw))
```

```python
import sys, re
sys.path.insert(0,'gen')
import v9
DOC = """;
;   b < 224  : producer (r = b>>3, j = b&7).
;   Hand-offs are 16-byte records {v0, v1, tag_lo, tag_hi}; the tag is derived from an epoch pair kept at
"""
t = v9.gen(nt="nt", fin2=True, slp=0, inner=6, inner2=1, t0=8, ne=5, dclk=3, g2=True, ib=(8,), pre=2, pfsz=3200, slow_sleep=0)
t = t.replace("; @launch grid=(256,1,1) block=(256,1,1) lds=8192\n", "; @launch grid=(256,1,1) block=(256,1,1) lds=8192\n"+DOC)
t = t.replace(".p2align 12\n.type", ".p2align 12\n.p2align 8\n.type")
t = t.replace("    ; DIAG_SPIN\n","")
t = re.sub(r"[ \t]+\n", "\n", t)
t = re.sub(r"\n\n+", "\n", t)
open(sys.argv[1],"w").write(t)
```

```python
from common import *
from stampify import stampify
import sys, re

EPOCH = 0x0
HOP2 = 0x1000
HOP1 = 0x40000

def gen(stamps=False, nt="", ntd=None, fast=True, align=12, inner=4, slp=1, outflag="", inner2=0, pfsz=0xb80,
        slow_sleep=4, nearly=2, kb=0, dclk=0, first_sleep=0, split=0, pre=0, t0=-1, ne=4, step=1, pbar=True, w0skip=True, tlbd=False, fin2=False, ib=(), priv=False, pfnt="", lay=0, pord=0, g2=False, hv=False, kint=False, early=False, pw=0):
    if ntd is None: ntd=nt
    o=[]; A=o.append
    N1="standalone__geglu_ffn__decode_kernel"
    A(HEADER.rstrip())
    A(f"; @launch grid=(256,1,1) block=(256,1,1) lds=8192")
    A('.amdgcn_target "amdgcn-amd-amdhsa--gfx950"')
    A(".text")
    A(f".globl {N1}\n.p2align {align}\n.type {N1},@function\n{N1}:")
    GA=8
    XV=24
    AX=32
    GD=64
    DD=128
    D1=160; D2=164; E1=168; E2=172
    P=176
    SEL=184
    DA,DB,LW,LR,H1S,H1L,H2S,XIA,XI,PF = 188,189,190,191,192,193,194,195,196,197
    NV=200
    if priv:
        h1s=f"""    s_lshl_b32 s27, s18, 16
    s_lshl_b32 s28, s19, 10
    s_add_u32 s27, s27, s28
    s_lshl_b32 s28, s29, 14
    s_add_u32 s27, s27, s28
    s_add_u32 s27, s27, {HOP1}
    v_lshl_add_u32 v{H1S}, v{LR}, 1, s27
    v_add_u32 v198, 8192, v{H1S}"""
    else:
        h1s=f"""    s_lshl_b32 s27, s2, 10
    s_add_u32 s27, s27, {HOP1}
    v_lshl_add_u32 v{H1S}, v{LR}, 1, s27"""
    pwsetup=""
    if pw:
        pwsetup=f"""    v_and_b32 v5, 15, v0
    s_lshl_b32 s31, s2, 10
    s_lshl_b32 s30, s29, 8
    s_add_u32 s31, s31, s30
    s_add_u32 s31, s31, {HOP1}
    v_lshl_add_u32 v5, v5, 4, s31
    v_mov_b32 v{P}, 0
    v_mov_b32 v{P+1}, 0
    v_mov_b32 v{P+2}, 0
    v_mov_b32 v{P+3}, 0"""
    pre1=pre2=""
    tlb=""
    if tlbd:
        tlb="""    v_and_b32 v8, 7, v0
    v_mul_u32_u24 v8, 0xfffc0, v8
    global_load_dword v9, v8, s[10:11]"""
    if pre:
        if kint:
            head=f"""    s_lshr_b32 s26, s19, 1
    s_lshl_b32 s27, s18, 2
    s_add_u32 s27, s27, s29
    s_lshl_b32 s27, s27, 2
    s_add_u32 s27, s27, s26          ; 4*(4k+w) + kc
    s_mul_i32 s27, s27, {16*7168}
    s_add_u32 s27, s27, {12*7168+2048}"""
        elif hv:
            head=f"""    s_lshr_b32 s26, s19, 1
    s_lshl_b32 s27, s26, 3
    s_add_u32 s27, s27, s18
    s_lshl_b32 s27, s27, 2
    s_add_u32 s27, s27, s29          ; 32kc + 4k + w
    s_mul_i32 s27, s27, {8*7168}
    s_add_u32 s27, s27, {(128+4)*7168+2048}"""
        else:
            head=f"""    s_lshr_b32 s26, s19, 1
    s_lshl_b32 s27, s26, 2
    s_add_u32 s27, s27, s18
    s_lshl_b32 s27, s27, 2
    s_add_u32 s27, s27, s29          ; 16kc + 4k + w
    s_mul_i32 s27, s27, {16*7168}
    s_add_u32 s27, s27, {(12 if pord==0 else 16-4*pre)*7168+2048}"""
        pre1=head+f"""
    v_bfe_u32 v2, v0, 4, 2
    v_mul_u32_u24 v2, 7168, v2
    v_and_b32 v1, 15, v0
    v_lshl_add_u32 v2, v1, 4, v2
    s_bitcmp1_b32 s19, 0"""
        L=["    s_cselect_b64 s[20:21], s[8:9], s[6:7]",
           "    s_sub_u32 s28, 0x100, s20",
           "    s_and_b32 s28, s28, 0x300",
           "    s_add_u32 s27, s27, s28",
           "    v_add_u32 v2, s27, v2"]
        for n in range(pre):
            L.append("    v_add_u32 v3, 4096, v2")
            for i in range(7):
                L.append(f"    global_load_dwordx4 v[32:35], v{2 if i<4 else 3}, s[20:21] offset:{((i&3)-2)*1024} {pfnt}")
            if n+1<pre: L.append(f"    v_subrev_u32 v2, {4*7168}, v2" if pord==0 else f"    v_add_u32 v2, {4*7168}, v2")
        pre2="\n".join(L)
    stub_body=f"""    ; consumer stub: publish XCC id as early as possible
    s_sub_u32 s18, s18, 28
    s_lshl_b32 s27, s19, 4
    s_lshl_b32 s28, s18, 2
    s_add_u32 s27, s27, s28
    v_mov_b32 v5, s27
    v_mov_b32 v6, s45
{pre1}
    v_cmp_eq_u32 vcc, 0, v0
    s_waitcnt lgkmcnt(0)
    s_load_dwordx2 s[22:23], s[16:17], {EPOCH}
    s_cbranch_vccz L_noxi
    s_mov_b64 exec, 1
    global_store_dword v5, v6, s[14:15] sc1
    s_mov_b64 exec, -1
L_noxi:
{tlb}
{pre2}
    s_branch L_cons"""
    if lay==0:
        stub_top="    s_cmp_lt_u32 s18, 28\n    s_cbranch_scc1 L_prod\n"+stub_body; stub_end=""
    else:
        stub_top="    s_cmp_lt_u32 s18, 28\n    s_cbranch_scc0 L_stub"; stub_end="L_stub:\n"+stub_body.replace("    s_branch L_cons","")
    if split==0:
        gcol="    s_lshl_b32 s28, s18, 8"; gcol2=""
        drow="    s_lshl_b32 s27, s18, 18"; drow2=""
    else:
        if split==512:
            gcol="    s_and_b32 s31, s18, 0xfc\n    s_add_u32 s31, s31, s18\n    s_lshl_b32 s28, s31, 7"
        else:
            gcol="    s_and_b32 s31, s18, 0xfe\n    s_add_u32 s31, s31, s18\n    s_lshl_b32 s28, s31, 7"
        gcol2=f"    v_and_b32 v5, 8, v0\n    v_mul_u32_u24 v5, {(split-128)//8}, v5\n    v_add_u32 v4, v5, v4"
        drow="    s_lshl_b32 s27, s31, 17"
        drow2=f"    v_and_b32 v5, 0x80, v0\n    v_mul_u32_u24 v5, {(split//128-1)*64*2048//128}, v5\n    v_add_u32 v4, v5, v4"
    A(f"""
    ; STAMP 0
    s_load_dwordx8 s[4:11], s[0:1], 0
    s_load_dwordx4 s[12:15], s[0:1], 32
    s_load_dwordx2 s[16:17], s[0:1], 48
    s_cmp_ge_u32 s2, 256
    s_cbranch_scc1 L_exit
    s_getpc_b64 s[20:21]
    v_lshlrev_b32 v1, 7, v0
    v_cmp_gt_u32 vcc, {pfsz}, v1
    s_and_saveexec_b64 s[22:23], vcc
    s_cbranch_execz L_nopf
    global_load_dword v{PF}, v1, s[20:21]
L_nopf:
    s_mov_b64 exec, -1
    v_lshrrev_b32 v7, 6, v0          ; w
    s_lshr_b32 s18, s2, 3            ; r
    s_and_b32 s19, s2, 7             ; j
    v_readfirstlane_b32 s29, v7
    s_getreg_b32 s45, hwreg(HW_REG_XCC_ID, 0, 4)
    s_add_u32 s45, s45, 1
{stub_top}
L_prod:
{pwsetup}
    v_and_b32 v1, 15, v0             ; c
    v_lshrrev_b32 v2, 4, v0          ; 4w+q (0..15)
    s_lshr_b32 s26, s19, 1           ; kc
    s_lshl_b32 s27, s26, {5 if kint else 9}
    v_lshl_add_u32 v3, v2, {7 if kint else (4 if hv else 5)}, s27
    s_mul_i32 s27, s26, {(16 if kint else 256)*7168}
{gcol}
    s_add_u32 s27, s27, s28
    v_mul_u32_u24 v4, {(64 if kint else (8 if hv else 16))*7168}, v2
    v_lshl_add_u32 v4, v1, 4, v4
{gcol2}
    v_add_u32 v{GA}, s27, v4
""")
    if lay: A("    s_movk_i32 s28, 7168")
    for t in range(1,16):
        if lay: A(f"    v_add_u32 v{GA+t}, s28, v{GA+t-1}")
        else: A(f"    v_add_u32 v{GA+t}, {7168*(t if (t<8 or not hv) else t+120)}, v{GA}")
    A(f"""
    s_bitcmp1_b32 s19, 0
    s_waitcnt lgkmcnt(0)
    ; STAMP 1
    s_cselect_b64 s[20:21], s[8:9], s[6:7]
    global_load_dwordx4 v[{XV}:{XV+3}], v3, s[4:5]
    global_load_dwordx4 v[{XV+4}:{XV+7}], v3, s[4:5] offset:{256 if hv else 16}
""")
    def guloads(lo,hi):
        for t in range(lo,hi):
            if t in ib: A("    s_barrier")
            if pw and t==pw:
                A("    s_mov_b64 exec, 0xffff")
                A(f"    global_store_dwordx4 v5, v[{P}:{P+3}], s[16:17] sc1")
                A("    s_mov_b64 exec, -1")
            A(f"    global_load_dwordx4 v[{GD+4*t}:{GD+4*t+3}], v{GA+t}, s[20:21] {nt}")
    guloads(0, 8 if early else 16)
    A(f"""
    s_load_dwordx2 s[22:23], s[16:17], {EPOCH}
    ; selectors
    v_bfe_u32 v8, v0, 3, 1           ; hi
    v_mul_u32_u24 v8, 0x202, v8
    v_add_u32 v8, 0x100, v8
    v_lshlrev_b32 v9, 16, v8
    v_or_b32 v9, 0x0c0c, v9
    v_or_b32 v8, 0x0c0c0000, v8
    v_and_b32 v10, 1, v0
    v_cmp_eq_u32 vcc, 1, v10
    v_bfe_u32 v10, v0, 1, 2          ; mm>>1
    v_mov_b32 v11, 0x0c0c0c0c
    v_cndmask_b32 v8, v8, v9, vcc
""")
    for d in range(4):
        A(f"    v_cmp_eq_u32 vcc, {d}, v10")
        A("    s_nop 1")
        A(f"    v_cndmask_b32 v{SEL+d}, v11, v8, vcc")
    A(f"""
    v_and_b32 v{LR}, 63, v0
    v_lshlrev_b32 v{LR}, 3, v{LR}
    s_mul_i32 s27, s19, 28
    s_add_u32 s28, s27, s18
    s_lshl_b32 s28, s28, 10
    s_add_u32 s28, s28, {HOP2}
    v_lshl_add_u32 v{H2S}, v{LR}, 1, s28
    s_lshl_b32 s30, s19, 4
    v_and_b32 v9, 3, v0
    v_lshl_add_u32 v{XIA}, v9, 2, s30
{h1s}
    s_lshl_b32 s27, {"s2" if priv else "s18"}, 13
    s_add_u32 s27, s27, {HOP1}
    v_lshl_add_u32 v{H1L}, v2, 6, s27
    v_bfe_u32 v10, v0, 2, 2          ; kc
    v_lshl_add_u32 v{H1L}, v10, 11, v{H1L}
    v_bfe_i32 v10, v0, 2, 1
    v_xor_b32 v9, v9, v10
    v_and_b32 v9, 3, v9              ; gl'
    v_lshl_add_u32 v{H1L}, v9, 4, v{H1L}
    v_lshrrev_b32 v9, 5, v0
    v_lshlrev_b32 v{LW}, 9, v9
    v_lshl_add_u32 v{LW}, v1, 5, v{LW}
    v_and_b32 v9, 16, v0
    v_add_u32 v{LW}, v9, v{LW}
{drow}
    s_lshl_b32 s28, s19, 8
    s_add_u32 s27, s27, s28
    s_add_u32 s27, s27, 4096
    v_lshlrev_b32 v4, 14, v2
    v_lshl_add_u32 v4, v1, 4, v4
{drow2}
    v_add_u32 v{DA}, s27, v4
    v_add_u32 v{DB}, 8192, v{DA}
    s_mov_b32 s44, 0x40000
    v_mov_b32 v{P+2}, 0
    v_mov_b32 v{P+6}, 0
""")
    for i in range(16):
        A(f"    v_mov_b32 v{D1+i}, 0")
    dl=[f"    global_load_dwordx4 v[{DD+4*t}:{DD+4*t+3}], v{DA if t<4 else DB}, s[10:11] offset:{((t&3)-2)*2048} {ntd}" for t in range(8)]
    if early: guloads(8,16)
    A(f"    s_waitcnt vmcnt({17 if pw else 16})")
    for p in range(8):
        for d in range(4):
            A(f"    v_perm_b32 v{AX+4*p+d}, v{XV+p}, v{XV+p}, v{SEL+d}")
    def gu(t):
        D = D1 if t%2==0 else D2
        A(f"    s_waitcnt vmcnt({15-t})")
        A(f"    v_mfma_f32_16x16x32_bf16 v[{D}:{D+3}], v[{AX+4*(t>>1)}:{AX+4*(t>>1)+3}], v[{GD+4*t}:{GD+4*t+3}], v[{D}:{D+3}]")
    if t0<0:
        for t in range(kb): gu(t)
        A(f"    s_cmp_lt_u32 s29, {nearly}")
        A("    s_cbranch_scc1 L_nob1")
        A("    s_barrier")
        A("L_nob1:")
        for t in range(kb,16): gu(t)
        A("    ; STAMP 3")
        A("    s_cbranch_scc0 L_gudone")
        A("    s_barrier")
        for l in dl: A(l)
        A("L_gudone:")
    else:
        issued=0
        for t in range(16):
            D = D1 if t%2==0 else D2
            A(f"    s_waitcnt vmcnt({15-t+issued+(1 if (pw and t<pw) else 0)})")
            A(f"    v_mfma_f32_16x16x32_bf16 v[{D}:{D+3}], v[{AX+4*(t>>1)}:{AX+4*(t>>1)+3}], v[{GD+4*t}:{GD+4*t+3}], v[{D}:{D+3}]")
            if t>=t0 and (t-t0)%step==0 and issued<ne and t<15:
                A(dl[issued]); issued+=1
        ne=issued
        A("    ; STAMP 3")
        A("    s_nop 0")
    def ldswrite(Da, Db, off, nop):
        A("    s_mov_b32 exec_hi, 0")
        A(f"    s_nop {nop}")
        A(f"    ds_write_b128 v{LW}, v[{Da}:{Da+3}] offset:{off}")
        A("    s_not_b64 exec, exec")
        A(f"    ds_write_b128 v{LW}, v[{Db}:{Db+3}] offset:{off}")
        A("    s_mov_b64 exec, -1")
    def ldsreduce(off, mid=""):
        for i in range(8):
            A(f"    ds_read_b64 v[{8+2*i}:{9+2*i}], v{LR} offset:{off+512*i}")
        if mid: A(mid)
        A("    s_waitcnt lgkmcnt(4)")
        A("    v_pk_add_f32 v[8:9], v[8:9], v[10:11]")
        A("    v_pk_add_f32 v[12:13], v[12:13], v[14:15]")
        A("    s_waitcnt lgkmcnt(0)")
        A("    v_pk_add_f32 v[16:17], v[16:17], v[18:19]")
        A("    v_pk_add_f32 v[20:21], v[20:21], v[22:23]")
        A("    v_pk_add_f32 v[8:9], v[8:9], v[12:13]")
        A("    v_pk_add_f32 v[16:17], v[16:17], v[20:21]")
        A("    v_pk_add_f32 v[4:5], v[8:9], v[16:17]")
    ldswrite(D1, D2, 0, 4)
    if g2:
        gelu=f"""    v_add_f32_dpp v20, v{P}, v{P} row_ror:8 row_mask:0xf bank_mask:0x3
    v_add_f32_dpp v20, v{P+1}, v{P+1} row_ror:8 row_mask:0xf bank_mask:0xc
    v_add_f32_dpp v22, v{P+4}, v{P+4} row_ror:8 row_mask:0xf bank_mask:0x3
    v_add_f32_dpp v22, v{P+5}, v{P+5} row_ror:8 row_mask:0xf bank_mask:0xc
    v_add_f32_dpp v20, v20, v20 row_half_mirror row_mask:0xf bank_mask:0xf
    v_cvt_pk_bf16_f32 v21, 0, v20
    v_mul_f32 v24, v21, v21
    v_fmac_f32 v23, {f32hex(GELU_B)}, v24
    v_mul_f32 v24, v23, v21
    v_exp_f32 v24, v24
    v_add_f32_dpp v22, v22, v22 row_half_mirror row_mask:0xf bank_mask:0xf
    v_add_f32 v24, 1.0, v24
    v_rcp_f32 v24, v24
    v_cvt_pk_bf16_f32 v22, 0, v22    ; u
    v_mul_f32 v24, v24, v21          ; gelu
    v_cvt_pk_bf16_f32 v24, 0, v24
    v_mul_f32 v24, v24, v22          ; h"""
    else:
        gelu=f"""    v_add_f32_dpp v20, v{P}, v{P} row_ror:8 row_mask:0xf bank_mask:0x3
    v_add_f32_dpp v20, v{P+1}, v{P+1} row_ror:8 row_mask:0xf bank_mask:0xc
    v_add_f32_dpp v21, v{P+4}, v{P+4} row_ror:8 row_mask:0xf bank_mask:0x3
    v_add_f32_dpp v21, v{P+5}, v{P+5} row_ror:8 row_mask:0xf bank_mask:0xc
    v_add_f32_dpp v20, v20, v20 row_half_mirror row_mask:0xf bank_mask:0xf
    s_nop 0
    v_add_f32_dpp v21, v21, v21 row_half_mirror row_mask:0xf bank_mask:0xf
    v_cvt_pk_bf16_f32 v20, v20, v21
    v_lshlrev_b32 v21, 16, v20       ; g
    v_mul_f32 v24, v21, v21
    v_fmac_f32 v23, {f32hex(GELU_B)}, v24
    v_mul_f32 v24, v23, v21
    v_exp_f32 v24, v24
    v_and_b32 v22, 0xffff0000, v20   ; u
    v_add_f32 v24, 1.0, v24
    v_rcp_f32 v24, v24
    s_nop 0
    v_mul_f32 v24, v24, v21          ; gelu
    v_cvt_pk_bf16_f32 v24, v24, v24
    v_lshlrev_b32 v24, 16, v24
    v_mul_f32 v24, v24, v22          ; h"""
    A(f"""
    s_cmp_lg_u32 s29, 0
    s_waitcnt lgkmcnt(0)
    s_barrier
{"" if priv else "    s_cbranch_scc1 L_p1start"}
""")
    ldsreduce(0, "    s_add_u32 s24, s22, 2\n    s_or_b32 s24, s24, 1\n    s_add_u32 s25, s23, 0x9e3779b9\n    v_mov_b32 v6, s24\n    v_mov_b32 v7, s25")
    A(f"""
    global_store_dwordx4 v{H1S}, v[4:7], s[16:17] sc1
{f"    global_store_dwordx4 v198, v[4:7], s[16:17] sc1" if priv else ""}
    global_load_dword v{XI}, v{XIA}, s[14:15] sc1
    ; STAMP 4
L_p1start:
    s_barrier
""")
    if t0<0:
        A(f"    s_cmp_lt_u32 s29, {nearly}")
        A("    s_cbranch_scc1 L_ew")
        for l in dl: A(l)
        A(f"""
    s_branch L_eb
L_ew:
    s_cmp_eq_u32 s29, 0
    s_cbranch_scc1 L_eb
    s_waitcnt vmcnt({dclk})
L_eb:""")
    else:
        for l in dl[ne:]: A(l)
        if w0skip and not priv:
            A("    s_cmp_eq_u32 s29, 0")
            A("    s_cbranch_scc1 L_eb")
        A(f"    s_waitcnt vmcnt({dclk+(3 if priv else 0)})")
        A("L_eb:")
    A(f"""
    s_add_u32 s24, s22, 2
    s_or_b32 s24, s24, 1
    s_add_u32 s25, s23, 0x9e3779b9
    v_mov_b32 v23, {f32hex(GELU_A)}
{"    s_barrier" if pbar else ""}
{f"    s_sleep {first_sleep}" if first_sleep else ""}
    ; STAMP 2
L_poll1:
    global_load_dwordx4 v[{P}:{P+3}], v{H1L}, s[16:17] sc1
    global_load_dwordx4 v[{P+4}:{P+7}], v{H1L}, s[16:17] offset:1024 sc1
    s_mov_b32 s46, {inner}
L_chk1:
{f"    s_sleep {slp}" if slp else ""}
    v_cmp_eq_u64 vcc, s[24:25], v[{P+2}:{P+3}]
    v_cmp_eq_u64 s[30:31], s[24:25], v[{P+6}:{P+7}]
    s_and_b64 vcc, vcc, s[30:31]
    s_cmp_eq_u64 vcc, -1
    s_cbranch_scc1 L_done1
    s_sub_u32 s46, s46, 1
    s_cbranch_scc0 L_chk1
    s_sub_u32 s44, s44, 1
    s_cbranch_scc0 L_poll1
L_done1:
    ; STAMP 5
{gelu}
    s_nop 1
    v_mov_b32_dpp v25, v24 row_ror:8 row_mask:0xf bank_mask:0xf
    v_cvt_pk_bf16_f32 v24, v24, v25  ; (even, odd) in lanes with bit3=0
    s_nop 1
""")
    def bc(p): A(f"    v_mov_b32_dpp v{26+p}, v24 row_newbcast:{p} row_mask:0xf bank_mask:0xf")
    def pm(p):
        for d in range(4): A(f"    v_perm_b32 v{AX+4*p+d}, v{26+p}, v{26+p}, v{SEL+d}")
    def mf(t):
        D = E1 if t%2==0 else E2
        A(f"    v_mfma_f32_16x16x32_bf16 v[{D}:{D+3}], v[{AX+4*(t>>1)}:{AX+4*(t>>1)+3}], v[{DD+4*t}:{DD+4*t+3}], v[{D}:{D+3}]")
    bc(0); pm(0); bc(1); bc(2)
    mf(0); bc(3);
    A(f"    v_perm_b32 v{AX+4}, v27, v27, v{SEL}")
    mf(1)
    for d in range(1,4): A(f"    v_perm_b32 v{AX+4+d}, v27, v27, v{SEL+d}")
    A(f"    v_perm_b32 v{AX+8}, v28, v28, v{SEL}")
    A(f"    v_perm_b32 v{AX+9}, v28, v28, v{SEL+1}")
    mf(2)
    A(f"    v_perm_b32 v{AX+10}, v28, v28, v{SEL+2}")
    A(f"    v_perm_b32 v{AX+11}, v28, v28, v{SEL+3}")
    mf(3)
    A(f"    v_perm_b32 v{AX+12}, v29, v29, v{SEL}")
    A(f"    v_perm_b32 v{AX+13}, v29, v29, v{SEL+1}")
    mf(4)
    A(f"    v_perm_b32 v{AX+14}, v29, v29, v{SEL+2}")
    A(f"    v_perm_b32 v{AX+15}, v29, v29, v{SEL+3}")
    mf(5)
    A("    s_nop 0")
    mf(6); mf(7)
    ldswrite(E1, E2, 4096, 5)
    A(f"""
    s_cmp_lg_u32 s29, 0
    s_waitcnt lgkmcnt(0)
    s_barrier
    ; STAMP 6
    s_cbranch_scc1 L_end
""")
    ldsreduce(4096, f"    v_cmp_eq_u32 vcc, s45, v{XI}\n    s_cmp_eq_u64 vcc, -1")
    if fast:
        A(f"""
    s_cbranch_scc0 L_slowpub
    global_store_dwordx4 v{H2S}, v[4:7], s[16:17]
    ; STAMP 7
    s_branch L_end
L_slowpub:
""")
    Q=8
    if fin2:
        final=f"""    v_pk_add_f32 v[16:17], v[{Q}:{Q+1}], v[{Q+4}:{Q+5}]
    s_mov_b64 exec, -1
    s_nop 0
    v_permlane32_swap_b32 v16, v17
    v_add_f32 v16, v16, v17
    s_nop 1
    v_add_f32_dpp v16, v16, v16 row_ror:8 row_mask:0xf bank_mask:0xf
    s_nop 1
    v_add_f32_dpp v17, v16, v16 row_ror:4 row_mask:0xf bank_mask:0xf
    v_add_f32_dpp v16, v16, v16 row_ror:4 row_mask:0xf bank_mask:0xf
    s_nop 1
    v_permlane16_swap_b32 v16, v17
    s_mov_b64 exec, s[38:39]
    v_add_f32 v16, v16, v17
    v_cvt_pk_bf16_f32 v16, v16, v16
    global_store_short v4, v16, s[12:13] {outflag}"""
        outaddr="""    v_lshl_add_u32 v4, v2, 2, s27
    v_bfe_u32 v19, v0, 5, 1
    v_lshl_add_u32 v4, v19, 1, v4
    s_mov_b32 s38, 0xf
    s_mov_b32 s39, 0xf"""
    else:
        final=f"""    v_pk_add_f32 v[16:17], v[{Q}:{Q+1}], v[{Q+4}:{Q+5}]
    s_mov_b64 exec, -1
    s_nop 0
    v_permlane32_swap_b32 v16, v17
    s_nop 0
    v_add_f32 v16, v16, v17
    s_nop 1
    v_add_f32_dpp v16, v16, v16 row_ror:8 row_mask:0xf bank_mask:0xf
    s_nop 1
    v_add_f32_dpp v16, v16, v16 row_ror:4 row_mask:0xf bank_mask:0xf
    v_mov_b32 v17, v16
    s_nop 1
    v_permlane16_swap_b32 v16, v17
    s_nop 0
    v_add_f32 v16, v16, v17
    v_mov_b32 v17, v16
    s_nop 1
    v_permlane32_swap_b32 v16, v17
    s_mov_b64 exec, 0xf
    v_cvt_pk_bf16_f32 v16, v16, v17
    global_store_dword v4, v16, s[12:13] {outflag}"""
        outaddr="    v_lshl_add_u32 v4, v2, 2, s27"
    A(f"""
    global_store_dwordx4 v{H2S}, v[4:7], s[16:17] sc1
    s_branch L_end
{stub_end}
L_cons:
    s_mul_i32 s27, s19, {28*1024}
    s_lshl_b32 s28, s18, 8
    s_add_u32 s27, s27, s28
    s_lshl_b32 s28, s29, 6
    s_add_u32 s27, s27, s28
    s_add_u32 s27, s27, {HOP2}
    v_bfe_u32 v1, v0, 2, 4           ; pr
    v_and_b32 v2, 3, v0              ; gi
    v_lshlrev_b32 v3, 11, v1
    v_lshl_add_u32 v3, v2, 4, v3
    v_add_u32 v3, s27, v3
    s_lshl_b32 s27, s19, 8
    s_lshl_b32 s28, s18, 6
    s_add_u32 s27, s27, s28
    s_lshl_b32 s28, s29, 4
    s_add_u32 s27, s27, s28
{outaddr}
    v_mov_b32 v16, 0
    v_mov_b32 v17, 0
    v_mov_b32 v18, 0
    v_and_b32 v7, 31, v0
    v_lshlrev_b32 v7, 2, v7
    s_mov_b32 s44, 0x40000
    s_waitcnt lgkmcnt(0)
    s_add_u32 s24, s22, 2
    s_or_b32 s24, s24, 1
    s_add_u32 s25, s23, 0x9e3779b9
    s_barrier
    s_cmp_lg_u32 s29, 0
    s_cbranch_scc1 L_cpoll
    s_mov_b64 exec, 1
    global_store_dword v5, v6, s[14:15] offset:128 sc1
    s_mov_b64 exec, -1
L_cpoll:
    ; STAMP 1
    s_mov_b32 exec_hi, 0x00ffffff
L_slowpoll:
    global_load_dwordx4 v[{Q}:{Q+3}], v3, s[16:17] sc1
    global_load_dwordx4 v[{Q+4}:{Q+7}], v3, s[16:17] offset:1024 sc1
    s_waitcnt vmcnt(0)
    v_cmp_eq_u64 vcc, s[24:25], v[{Q+2}:{Q+3}]
    v_cmp_eq_u64 s[30:31], s[24:25], v[{Q+6}:{Q+7}]
    s_or_b64 vcc, vcc, s[30:31]
    s_cbranch_scc1 L_fastp
{f'    s_sleep {slow_sleep}' if slow_sleep else ''}
    s_sub_u32 s44, s44, 1
    s_cbranch_scc0 L_slowpoll
L_fastp:
    s_lshl_b32 s36, s29, 8
    s_add_u32 s36, s36, s2
    s_cmp_lg_u32 s36, 224
    s_cbranch_scc1 L_poll2
    global_load_dword v18, v7, s[14:15] offset:128 sc1
L_poll2:
    global_load_dwordx4 v[{Q}:{Q+3}], v3, s[16:17] sc1
    global_load_dwordx4 v[{Q+4}:{Q+7}], v3, s[16:17] offset:1024 sc1
    s_mov_b32 s46, {inner2}
L_chk2:
    v_cmp_eq_u64 vcc, s[24:25], v[{Q+2}:{Q+3}]
    v_cmp_eq_u64 s[30:31], s[24:25], v[{Q+6}:{Q+7}]
    s_and_b64 vcc, vcc, s[30:31]
    s_cmp_eq_u64 vcc, exec
    s_cbranch_scc1 L_done2
    s_sub_u32 s46, s46, 1
    s_cbranch_scc0 L_chk2
    s_sub_u32 s44, s44, 1
    s_cbranch_scc0 L_poll2
L_done2:
    ; STAMP 8
{final}
    ; DIAG_SPIN
    s_cmp_lg_u32 s36, 224
    s_cbranch_scc1 L_end
    ; epoch update once every consumer has read the old one
    s_mov_b64 exec, 0xffffffff
    s_mov_b32 exec_hi, 0
L_xall:
    v_cmp_ne_u32 vcc, 0, v18
    s_cmp_eq_u64 vcc, exec
    s_cbranch_scc1 L_xok
    global_load_dword v18, v7, s[14:15] offset:128 sc1
    s_waitcnt vmcnt(0)
    s_sub_u32 s44, s44, 1
    s_cbranch_scc0 L_xall
L_xok:
    v_mov_b32 v6, s24
    v_mov_b32 v7, s25
    v_mov_b32 v5, {EPOCH}
    s_mov_b64 exec, 1
    global_store_dwordx2 v5, v[6:7], s[16:17]
L_end:
{"    s_waitcnt vmcnt(0)" if stamps else ""}
    ; STAMP 9
L_exit:
    s_endpgm
""")
    A('.section .rodata,"a"'); A(".p2align 6"); A(kdesc(N1, NV, 48))
    t=stampify("\n".join(o), stamps)
    if stamps:
        for a,b in (("v150","v250"),("v152","v252"),("v153","v253"),("v155","v255"),("152:153","252:253")):
            pass
    return t

if __name__=="__main__":
    out=sys.argv[1]
    kw={}
    for a in sys.argv[2:]:
        k,v=a.split("=")
        if k in ("stamps","fast","pbar","w0skip","tlbd","fin2","priv","g2","hv","kint","early"): kw[k]=(v=="1")
        elif k in ("align","inner","slp","inner2","pfsz","slow_sleep","nearly","kb","dclk","first_sleep","split","pre","t0","ne","step","lay","pord","pw"): kw[k]=int(v)
        elif k=="ib": kw[k]=tuple(int(x) for x in v.split(","))
        else: kw[k]=v.replace("_"," ").replace("none","")
    open(out,"w").write(gen(**kw))
```

```python
from common import *
from stampify import stampify
import sys, re

EPOCH = 0x0
HOP2 = 0x1000
HOP1 = 0x40000

def gen(stamps=False, nt="", ntd=None, fast=True, align=12, inner=4, slp=1, outflag="", inner2=0, pfsz=0xb80,
        slow_sleep=4, nearly=2, kb=0, dclk=0, first_sleep=0, split=0, pre=0, t0=-1, ne=4, step=1, pbar=True, w0skip=True, tlbd=False, fin2=False, ib=(), priv=False, pfnt="", lay=0, pord=0, g2=False, hv=False, kint=False):
    if ntd is None: ntd=nt
    o=[]; A=o.append
    N1="standalone__geglu_ffn__decode_kernel"
    A(HEADER.rstrip())
    A(f"; @launch grid=(256,1,1) block=(256,1,1) lds=8192")
    A('.amdgcn_target "amdgcn-amd-amdhsa--gfx950"')
    A(".text")
    A(f".globl {N1}\n.p2align {align}\n.type {N1},@function\n{N1}:")
    GA=8
    XV=24
    AX=32
    GD=64
    DD=128
    D1=160; D2=164; E1=168; E2=172
    P=176
    SEL=184
    DA,DB,LW,LR,H1S,H1L,H2S,XIA,XI,PF = 188,189,190,191,192,193,194,195,196,197
    NV=200
    if priv:
        h1s=f"""    s_lshl_b32 s27, s18, 16
    s_lshl_b32 s28, s19, 10
    s_add_u32 s27, s27, s28
    s_lshl_b32 s28, s29, 14
    s_add_u32 s27, s27, s28
    s_add_u32 s27, s27, {HOP1}
    v_lshl_add_u32 v{H1S}, v{LR}, 1, s27
    v_add_u32 v198, 8192, v{H1S}"""
    else:
        h1s=f"""    s_lshl_b32 s27, s2, 10
    s_add_u32 s27, s27, {HOP1}
    v_lshl_add_u32 v{H1S}, v{LR}, 1, s27"""
    pre1=pre2=""
    tlb=""
    if tlbd:
        tlb="""    v_and_b32 v8, 7, v0
    v_mul_u32_u24 v8, 0xfffc0, v8
    global_load_dword v9, v8, s[10:11]"""
    if pre:
        if kint:
            head=f"""    s_lshr_b32 s26, s19, 1
    s_lshl_b32 s27, s18, 2
    s_add_u32 s27, s27, s29
    s_lshl_b32 s27, s27, 2
    s_add_u32 s27, s27, s26          ; 4*(4k+w) + kc
    s_mul_i32 s27, s27, {16*7168}
    s_add_u32 s27, s27, {12*7168+2048}"""
        elif hv:
            head=f"""    s_lshr_b32 s26, s19, 1
    s_lshl_b32 s27, s26, 3
    s_add_u32 s27, s27, s18
    s_lshl_b32 s27, s27, 2
    s_add_u32 s27, s27, s29          ; 32kc + 4k + w
    s_mul_i32 s27, s27, {8*7168}
    s_add_u32 s27, s27, {(128+4)*7168+2048}"""
        else:
            head=f"""    s_lshr_b32 s26, s19, 1
    s_lshl_b32 s27, s26, 2
    s_add_u32 s27, s27, s18
    s_lshl_b32 s27, s27, 2
    s_add_u32 s27, s27, s29          ; 16kc + 4k + w
    s_mul_i32 s27, s27, {16*7168}
    s_add_u32 s27, s27, {(12 if pord==0 else 16-4*pre)*7168+2048}"""
        pre1=head+f"""
    v_bfe_u32 v2, v0, 4, 2
    v_mul_u32_u24 v2, 7168, v2
    v_and_b32 v1, 15, v0
    v_lshl_add_u32 v2, v1, 4, v2
    s_bitcmp1_b32 s19, 0"""
        L=["    s_cselect_b64 s[20:21], s[8:9], s[6:7]",
           "    s_sub_u32 s28, 0x100, s20",
           "    s_and_b32 s28, s28, 0x300",
           "    s_add_u32 s27, s27, s28",
           "    v_add_u32 v2, s27, v2"]
        for n in range(pre):
            L.append("    v_add_u32 v3, 4096, v2")
            for i in range(7):
                L.append(f"    global_load_dwordx4 v[32:35], v{2 if i<4 else 3}, s[20:21] offset:{((i&3)-2)*1024} {pfnt}")
            if n+1<pre: L.append(f"    v_subrev_u32 v2, {4*7168}, v2" if pord==0 else f"    v_add_u32 v2, {4*7168}, v2")
        pre2="\n".join(L)
    stub_body=f"""    ; consumer stub: publish XCC id as early as possible
    s_sub_u32 s18, s18, 28
    s_lshl_b32 s27, s19, 4
    s_lshl_b32 s28, s18, 2
    s_add_u32 s27, s27, s28
    v_mov_b32 v5, s27
    v_mov_b32 v6, s45
{pre1}
    v_cmp_eq_u32 vcc, 0, v0
    s_waitcnt lgkmcnt(0)
    s_load_dwordx2 s[22:23], s[16:17], {EPOCH}
    s_cbranch_vccz L_noxi
    s_mov_b64 exec, 1
    global_store_dword v5, v6, s[14:15] sc1
    s_mov_b64 exec, -1
L_noxi:
{tlb}
{pre2}
    s_branch L_cons"""
    if lay==0:
        stub_top="    s_cmp_lt_u32 s18, 28\n    s_cbranch_scc1 L_prod\n"+stub_body; stub_end=""
    else:
        stub_top="    s_cmp_lt_u32 s18, 28\n    s_cbranch_scc0 L_stub"; stub_end="L_stub:\n"+stub_body.replace("    s_branch L_cons","")
    if split==0:
        gcol="    s_lshl_b32 s28, s18, 8"; gcol2=""
        drow="    s_lshl_b32 s27, s18, 18"; drow2=""
    else:
        if split==512:
            gcol="    s_and_b32 s31, s18, 0xfc\n    s_add_u32 s31, s31, s18\n    s_lshl_b32 s28, s31, 7"
        else:
            gcol="    s_and_b32 s31, s18, 0xfe\n    s_add_u32 s31, s31, s18\n    s_lshl_b32 s28, s31, 7"
        gcol2=f"    v_and_b32 v5, 8, v0\n    v_mul_u32_u24 v5, {(split-128)//8}, v5\n    v_add_u32 v4, v5, v4"
        drow="    s_lshl_b32 s27, s31, 17"
        drow2=f"    v_and_b32 v5, 0x80, v0\n    v_mul_u32_u24 v5, {(split//128-1)*64*2048//128}, v5\n    v_add_u32 v4, v5, v4"
    A(f"""
    ; STAMP 0
    s_load_dwordx8 s[4:11], s[0:1], 0
    s_load_dwordx4 s[12:15], s[0:1], 32
    s_load_dwordx2 s[16:17], s[0:1], 48
    s_cmp_ge_u32 s2, 256
    s_cbranch_scc1 L_exit
    s_getpc_b64 s[20:21]
    v_lshlrev_b32 v1, 7, v0
    v_cmp_gt_u32 vcc, {pfsz}, v1
    s_and_saveexec_b64 s[22:23], vcc
    s_cbranch_execz L_nopf
    global_load_dword v{PF}, v1, s[20:21]
L_nopf:
    s_mov_b64 exec, -1
    v_lshrrev_b32 v7, 6, v0          ; w
    s_lshr_b32 s18, s2, 3            ; r
    s_and_b32 s19, s2, 7             ; j
    v_readfirstlane_b32 s29, v7
    s_getreg_b32 s45, hwreg(HW_REG_XCC_ID, 0, 4)
    s_add_u32 s45, s45, 1
{stub_top}
L_prod:
    v_and_b32 v1, 15, v0             ; c
    v_lshrrev_b32 v2, 4, v0          ; 4w+q (0..15)
    s_lshr_b32 s26, s19, 1           ; kc
    s_lshl_b32 s27, s26, {5 if kint else 9}
    v_lshl_add_u32 v3, v2, {7 if kint else (4 if hv else 5)}, s27
    s_mul_i32 s27, s26, {(16 if kint else 256)*7168}
{gcol}
    s_add_u32 s27, s27, s28
    v_mul_u32_u24 v4, {(64 if kint else (8 if hv else 16))*7168}, v2
    v_lshl_add_u32 v4, v1, 4, v4
{gcol2}
    v_add_u32 v{GA}, s27, v4
""")
    if lay: A("    s_movk_i32 s28, 7168")
    for t in range(1,16):
        if lay: A(f"    v_add_u32 v{GA+t}, s28, v{GA+t-1}")
        else: A(f"    v_add_u32 v{GA+t}, {7168*(t if (t<8 or not hv) else t+120)}, v{GA}")
    A(f"""
    s_bitcmp1_b32 s19, 0
    s_waitcnt lgkmcnt(0)
    ; STAMP 1
    s_cselect_b64 s[20:21], s[8:9], s[6:7]
    global_load_dwordx4 v[{XV}:{XV+3}], v3, s[4:5]
    global_load_dwordx4 v[{XV+4}:{XV+7}], v3, s[4:5] offset:{256 if hv else 16}
""")
    for t in range(16):
        if t in ib: A("    s_barrier")
        A(f"    global_load_dwordx4 v[{GD+4*t}:{GD+4*t+3}], v{GA+t}, s[20:21] {nt}")
    A(f"""
    s_load_dwordx2 s[22:23], s[16:17], {EPOCH}
    ; selectors
    v_bfe_u32 v8, v0, 3, 1           ; hi
    v_mul_u32_u24 v8, 0x202, v8
    v_add_u32 v8, 0x100, v8
    v_lshlrev_b32 v9, 16, v8
    v_or_b32 v9, 0x0c0c, v9
    v_or_b32 v8, 0x0c0c0000, v8
    v_and_b32 v10, 1, v0
    v_cmp_eq_u32 vcc, 1, v10
    v_bfe_u32 v10, v0, 1, 2          ; mm>>1
    v_mov_b32 v11, 0x0c0c0c0c
    v_cndmask_b32 v8, v8, v9, vcc
""")
    for d in range(4):
        A(f"    v_cmp_eq_u32 vcc, {d}, v10")
        A("    s_nop 1")
        A(f"    v_cndmask_b32 v{SEL+d}, v11, v8, vcc")
    A(f"""
    v_and_b32 v{LR}, 63, v0
    v_lshlrev_b32 v{LR}, 3, v{LR}
    s_mul_i32 s27, s19, 28
    s_add_u32 s28, s27, s18
    s_lshl_b32 s28, s28, 10
    s_add_u32 s28, s28, {HOP2}
    v_lshl_add_u32 v{H2S}, v{LR}, 1, s28
    s_lshl_b32 s30, s19, 4
    v_and_b32 v9, 3, v0
    v_lshl_add_u32 v{XIA}, v9, 2, s30
{h1s}
    s_lshl_b32 s27, {"s2" if priv else "s18"}, 13
    s_add_u32 s27, s27, {HOP1}
    v_lshl_add_u32 v{H1L}, v2, 6, s27
    v_bfe_u32 v10, v0, 2, 2          ; kc
    v_lshl_add_u32 v{H1L}, v10, 11, v{H1L}
    v_bfe_i32 v10, v0, 2, 1
    v_xor_b32 v9, v9, v10
    v_and_b32 v9, 3, v9              ; gl'
    v_lshl_add_u32 v{H1L}, v9, 4, v{H1L}
    v_lshrrev_b32 v9, 5, v0
    v_lshlrev_b32 v{LW}, 9, v9
    v_lshl_add_u32 v{LW}, v1, 5, v{LW}
    v_and_b32 v9, 16, v0
    v_add_u32 v{LW}, v9, v{LW}
{drow}
    s_lshl_b32 s28, s19, 8
    s_add_u32 s27, s27, s28
    s_add_u32 s27, s27, 4096
    v_lshlrev_b32 v4, 14, v2
    v_lshl_add_u32 v4, v1, 4, v4
{drow2}
    v_add_u32 v{DA}, s27, v4
    v_add_u32 v{DB}, 8192, v{DA}
    s_mov_b32 s44, 0x40000
    v_mov_b32 v{P+2}, 0
    v_mov_b32 v{P+6}, 0
""")
    for i in range(16):
        A(f"    v_mov_b32 v{D1+i}, 0")
    dl=[f"    global_load_dwordx4 v[{DD+4*t}:{DD+4*t+3}], v{DA if t<4 else DB}, s[10:11] offset:{((t&3)-2)*2048} {ntd}" for t in range(8)]
    A("    s_waitcnt vmcnt(16)")
    for p in range(8):
        for d in range(4):
            A(f"    v_perm_b32 v{AX+4*p+d}, v{XV+p}, v{XV+p}, v{SEL+d}")
    def gu(t):
        D = D1 if t%2==0 else D2
        A(f"    s_waitcnt vmcnt({15-t})")
        A(f"    v_mfma_f32_16x16x32_bf16 v[{D}:{D+3}], v[{AX+4*(t>>1)}:{AX+4*(t>>1)+3}], v[{GD+4*t}:{GD+4*t+3}], v[{D}:{D+3}]")
    if t0<0:
        for t in range(kb): gu(t)
        A(f"    s_cmp_lt_u32 s29, {nearly}")
        A("    s_cbranch_scc1 L_nob1")
        A("    s_barrier")
        A("L_nob1:")
        for t in range(kb,16): gu(t)
        A("    ; STAMP 3")
        A("    s_cbranch_scc0 L_gudone")
        A("    s_barrier")
        for l in dl: A(l)
        A("L_gudone:")
    else:
        issued=0
        for t in range(16):
            D = D1 if t%2==0 else D2
            A(f"    s_waitcnt vmcnt({15-t+issued})")
            A(f"    v_mfma_f32_16x16x32_bf16 v[{D}:{D+3}], v[{AX+4*(t>>1)}:{AX+4*(t>>1)+3}], v[{GD+4*t}:{GD+4*t+3}], v[{D}:{D+3}]")
            if t>=t0 and (t-t0)%step==0 and issued<ne and t<15:
                A(dl[issued]); issued+=1
        ne=issued
        A("    ; STAMP 3")
        A("    s_nop 0")
    def ldswrite(Da, Db, off, nop):
        A("    s_mov_b32 exec_hi, 0")
        A(f"    s_nop {nop}")
        A(f"    ds_write_b128 v{LW}, v[{Da}:{Da+3}] offset:{off}")
        A("    s_not_b64 exec, exec")
        A(f"    ds_write_b128 v{LW}, v[{Db}:{Db+3}] offset:{off}")
        A("    s_mov_b64 exec, -1")
    def ldsreduce(off, mid=""):
        for i in range(8):
            A(f"    ds_read_b64 v[{8+2*i}:{9+2*i}], v{LR} offset:{off+512*i}")
        if mid: A(mid)
        A("    s_waitcnt lgkmcnt(4)")
        A("    v_pk_add_f32 v[8:9], v[8:9], v[10:11]")
        A("    v_pk_add_f32 v[12:13], v[12:13], v[14:15]")
        A("    s_waitcnt lgkmcnt(0)")
        A("    v_pk_add_f32 v[16:17], v[16:17], v[18:19]")
        A("    v_pk_add_f32 v[20:21], v[20:21], v[22:23]")
        A("    v_pk_add_f32 v[8:9], v[8:9], v[12:13]")
        A("    v_pk_add_f32 v[16:17], v[16:17], v[20:21]")
        A("    v_pk_add_f32 v[4:5], v[8:9], v[16:17]")
    ldswrite(D1, D2, 0, 4)
    if g2:
        gelu=f"""    v_add_f32_dpp v20, v{P}, v{P} row_ror:8 row_mask:0xf bank_mask:0x3
    v_add_f32_dpp v20, v{P+1}, v{P+1} row_ror:8 row_mask:0xf bank_mask:0xc
    v_add_f32_dpp v22, v{P+4}, v{P+4} row_ror:8 row_mask:0xf bank_mask:0x3
    v_add_f32_dpp v22, v{P+5}, v{P+5} row_ror:8 row_mask:0xf bank_mask:0xc
    v_add_f32_dpp v20, v20, v20 row_half_mirror row_mask:0xf bank_mask:0xf
    v_cvt_pk_bf16_f32 v21, 0, v20
    v_mul_f32 v24, v21, v21
    v_fmac_f32 v23, {f32hex(GELU_B)}, v24
    v_mul_f32 v24, v23, v21
    v_exp_f32 v24, v24
    v_add_f32_dpp v22, v22, v22 row_half_mirror row_mask:0xf bank_mask:0xf
    v_add_f32 v24, 1.0, v24
    v_rcp_f32 v24, v24
    v_cvt_pk_bf16_f32 v22, 0, v22    ; u
    v_mul_f32 v24, v24, v21          ; gelu
    v_cvt_pk_bf16_f32 v24, 0, v24
    v_mul_f32 v24, v24, v22          ; h"""
    else:
        gelu=f"""    v_add_f32_dpp v20, v{P}, v{P} row_ror:8 row_mask:0xf bank_mask:0x3
    v_add_f32_dpp v20, v{P+1}, v{P+1} row_ror:8 row_mask:0xf bank_mask:0xc
    v_add_f32_dpp v21, v{P+4}, v{P+4} row_ror:8 row_mask:0xf bank_mask:0x3
    v_add_f32_dpp v21, v{P+5}, v{P+5} row_ror:8 row_mask:0xf bank_mask:0xc
    v_add_f32_dpp v20, v20, v20 row_half_mirror row_mask:0xf bank_mask:0xf
    s_nop 0
    v_add_f32_dpp v21, v21, v21 row_half_mirror row_mask:0xf bank_mask:0xf
    v_cvt_pk_bf16_f32 v20, v20, v21
    v_lshlrev_b32 v21, 16, v20       ; g
    v_mul_f32 v24, v21, v21
    v_fmac_f32 v23, {f32hex(GELU_B)}, v24
    v_mul_f32 v24, v23, v21
    v_exp_f32 v24, v24
    v_and_b32 v22, 0xffff0000, v20   ; u
    v_add_f32 v24, 1.0, v24
    v_rcp_f32 v24, v24
    s_nop 0
    v_mul_f32 v24, v24, v21          ; gelu
    v_cvt_pk_bf16_f32 v24, v24, v24
    v_lshlrev_b32 v24, 16, v24
    v_mul_f32 v24, v24, v22          ; h"""
    A(f"""
    s_cmp_lg_u32 s29, 0
    s_waitcnt lgkmcnt(0)
    s_barrier
{"" if priv else "    s_cbranch_scc1 L_p1start"}
""")
    ldsreduce(0, "    s_add_u32 s24, s22, 2\n    s_or_b32 s24, s24, 1\n    s_add_u32 s25, s23, 0x9e3779b9\n    v_mov_b32 v6, s24\n    v_mov_b32 v7, s25")
    A(f"""
    global_store_dwordx4 v{H1S}, v[4:7], s[16:17] sc1
{f"    global_store_dwordx4 v198, v[4:7], s[16:17] sc1" if priv else ""}
    global_load_dword v{XI}, v{XIA}, s[14:15] sc1
    ; STAMP 4
L_p1start:
    s_barrier
""")
    if t0<0:
        A(f"    s_cmp_lt_u32 s29, {nearly}")
        A("    s_cbranch_scc1 L_ew")
        for l in dl: A(l)
        A(f"""
    s_branch L_eb
L_ew:
    s_cmp_eq_u32 s29, 0
    s_cbranch_scc1 L_eb
    s_waitcnt vmcnt({dclk})
L_eb:""")
    else:
        for l in dl[ne:]: A(l)
        if w0skip and not priv:
            A("    s_cmp_eq_u32 s29, 0")
            A("    s_cbranch_scc1 L_eb")
        A(f"    s_waitcnt vmcnt({dclk+(3 if priv else 0)})")
        A("L_eb:")
    A(f"""
    s_add_u32 s24, s22, 2
    s_or_b32 s24, s24, 1
    s_add_u32 s25, s23, 0x9e3779b9
    v_mov_b32 v23, {f32hex(GELU_A)}
{"    s_barrier" if pbar else ""}
{f"    s_sleep {first_sleep}" if first_sleep else ""}
    ; STAMP 2
L_poll1:
    global_load_dwordx4 v[{P}:{P+3}], v{H1L}, s[16:17] sc1
    global_load_dwordx4 v[{P+4}:{P+7}], v{H1L}, s[16:17] offset:1024 sc1
    s_mov_b32 s46, {inner}
L_chk1:
{f"    s_sleep {slp}" if slp else ""}
    v_cmp_eq_u64 vcc, s[24:25], v[{P+2}:{P+3}]
    v_cmp_eq_u64 s[30:31], s[24:25], v[{P+6}:{P+7}]
    s_and_b64 vcc, vcc, s[30:31]
    s_cmp_eq_u64 vcc, -1
    s_cbranch_scc1 L_done1
    s_sub_u32 s46, s46, 1
    s_cbranch_scc0 L_chk1
    s_sub_u32 s44, s44, 1
    s_cbranch_scc0 L_poll1
L_done1:
    ; STAMP 5
{gelu}
    s_nop 1
    v_mov_b32_dpp v25, v24 row_ror:8 row_mask:0xf bank_mask:0xf
    v_cvt_pk_bf16_f32 v24, v24, v25  ; (even, odd) in lanes with bit3=0
    s_nop 1
""")
    def bc(p): A(f"    v_mov_b32_dpp v{26+p}, v24 row_newbcast:{p} row_mask:0xf bank_mask:0xf")
    def pm(p):
        for d in range(4): A(f"    v_perm_b32 v{AX+4*p+d}, v{26+p}, v{26+p}, v{SEL+d}")
    def mf(t):
        D = E1 if t%2==0 else E2
        A(f"    v_mfma_f32_16x16x32_bf16 v[{D}:{D+3}], v[{AX+4*(t>>1)}:{AX+4*(t>>1)+3}], v[{DD+4*t}:{DD+4*t+3}], v[{D}:{D+3}]")
    bc(0); pm(0); bc(1); bc(2)
    mf(0); bc(3);
    A(f"    v_perm_b32 v{AX+4}, v27, v27, v{SEL}")
    mf(1)
    for d in range(1,4): A(f"    v_perm_b32 v{AX+4+d}, v27, v27, v{SEL+d}")
    A(f"    v_perm_b32 v{AX+8}, v28, v28, v{SEL}")
    A(f"    v_perm_b32 v{AX+9}, v28, v28, v{SEL+1}")
    mf(2)
    A(f"    v_perm_b32 v{AX+10}, v28, v28, v{SEL+2}")
    A(f"    v_perm_b32 v{AX+11}, v28, v28, v{SEL+3}")
    mf(3)
    A(f"    v_perm_b32 v{AX+12}, v29, v29, v{SEL}")
    A(f"    v_perm_b32 v{AX+13}, v29, v29, v{SEL+1}")
    mf(4)
    A(f"    v_perm_b32 v{AX+14}, v29, v29, v{SEL+2}")
    A(f"    v_perm_b32 v{AX+15}, v29, v29, v{SEL+3}")
    mf(5)
    A("    s_nop 0")
    mf(6); mf(7)
    ldswrite(E1, E2, 4096, 5)
    A(f"""
    s_cmp_lg_u32 s29, 0
    s_waitcnt lgkmcnt(0)
    s_barrier
    ; STAMP 6
    s_cbranch_scc1 L_end
""")
    ldsreduce(4096, f"    v_cmp_eq_u32 vcc, s45, v{XI}\n    s_cmp_eq_u64 vcc, -1")
    if fast:
        A(f"""
    s_cbranch_scc0 L_slowpub
    global_store_dwordx4 v{H2S}, v[4:7], s[16:17]
    ; STAMP 7
    s_branch L_end
L_slowpub:
""")
    Q=8
    if fin2:
        final=f"""    v_pk_add_f32 v[16:17], v[{Q}:{Q+1}], v[{Q+4}:{Q+5}]
    s_mov_b64 exec, -1
    s_nop 0
    v_permlane32_swap_b32 v16, v17
    v_add_f32 v16, v16, v17
    s_nop 1
    v_add_f32_dpp v16, v16, v16 row_ror:8 row_mask:0xf bank_mask:0xf
    s_nop 1
    v_add_f32_dpp v17, v16, v16 row_ror:4 row_mask:0xf bank_mask:0xf
    v_add_f32_dpp v16, v16, v16 row_ror:4 row_mask:0xf bank_mask:0xf
    s_nop 1
    v_permlane16_swap_b32 v16, v17
    s_mov_b64 exec, s[38:39]
    v_add_f32 v16, v16, v17
    v_cvt_pk_bf16_f32 v16, v16, v16
    global_store_short v4, v16, s[12:13] {outflag}"""
        outaddr="""    v_lshl_add_u32 v4, v2, 2, s27
    v_bfe_u32 v19, v0, 5, 1
    v_lshl_add_u32 v4, v19, 1, v4
    s_mov_b32 s38, 0xf
    s_mov_b32 s39, 0xf"""
    else:
        final=f"""    v_pk_add_f32 v[16:17], v[{Q}:{Q+1}], v[{Q+4}:{Q+5}]
    s_mov_b64 exec, -1
    s_nop 0
    v_permlane32_swap_b32 v16, v17
    s_nop 0
    v_add_f32 v16, v16, v17
    s_nop 1
    v_add_f32_dpp v16, v16, v16 row_ror:8 row_mask:0xf bank_mask:0xf
    s_nop 1
    v_add_f32_dpp v16, v16, v16 row_ror:4 row_mask:0xf bank_mask:0xf
    v_mov_b32 v17, v16
    s_nop 1
    v_permlane16_swap_b32 v16, v17
    s_nop 0
    v_add_f32 v16, v16, v17
    v_mov_b32 v17, v16
    s_nop 1
    v_permlane32_swap_b32 v16, v17
    s_mov_b64 exec, 0xf
    v_cvt_pk_bf16_f32 v16, v16, v17
    global_store_dword v4, v16, s[12:13] {outflag}"""
        outaddr="    v_lshl_add_u32 v4, v2, 2, s27"
    A(f"""
    global_store_dwordx4 v{H2S}, v[4:7], s[16:17] sc1
    s_branch L_end
{stub_end}
L_cons:
    s_mul_i32 s27, s19, {28*1024}
    s_lshl_b32 s28, s18, 8
    s_add_u32 s27, s27, s28
    s_lshl_b32 s28, s29, 6
    s_add_u32 s27, s27, s28
    s_add_u32 s27, s27, {HOP2}
    v_bfe_u32 v1, v0, 2, 4           ; pr
    v_and_b32 v2, 3, v0              ; gi
    v_lshlrev_b32 v3, 11, v1
    v_lshl_add_u32 v3, v2, 4, v3
    v_add_u32 v3, s27, v3
    s_lshl_b32 s27, s19, 8
    s_lshl_b32 s28, s18, 6
    s_add_u32 s27, s27, s28
    s_lshl_b32 s28, s29, 4
    s_add_u32 s27, s27, s28
{outaddr}
    v_mov_b32 v16, 0
    v_mov_b32 v17, 0
    v_mov_b32 v18, 0
    v_and_b32 v7, 31, v0
    v_lshlrev_b32 v7, 2, v7
    s_mov_b32 s44, 0x40000
    s_waitcnt lgkmcnt(0)
    s_add_u32 s24, s22, 2
    s_or_b32 s24, s24, 1
    s_add_u32 s25, s23, 0x9e3779b9
    s_barrier
    s_cmp_lg_u32 s29, 0
    s_cbranch_scc1 L_cpoll
    s_mov_b64 exec, 1
    global_store_dword v5, v6, s[14:15] offset:128 sc1
    s_mov_b64 exec, -1
L_cpoll:
    ; STAMP 1
    s_mov_b32 exec_hi, 0x00ffffff
L_slowpoll:
    global_load_dwordx4 v[{Q}:{Q+3}], v3, s[16:17] sc1
    global_load_dwordx4 v[{Q+4}:{Q+7}], v3, s[16:17] offset:1024 sc1
    s_waitcnt vmcnt(0)
    v_cmp_eq_u64 vcc, s[24:25], v[{Q+2}:{Q+3}]
    v_cmp_eq_u64 s[30:31], s[24:25], v[{Q+6}:{Q+7}]
    s_or_b64 vcc, vcc, s[30:31]
    s_cbranch_scc1 L_fastp
{f'    s_sleep {slow_sleep}' if slow_sleep else ''}
    s_sub_u32 s44, s44, 1
    s_cbranch_scc0 L_slowpoll
L_fastp:
    s_lshl_b32 s36, s29, 8
    s_add_u32 s36, s36, s2
    s_cmp_lg_u32 s36, 224
    s_cbranch_scc1 L_poll2
    global_load_dword v18, v7, s[14:15] offset:128 sc1
L_poll2:
    global_load_dwordx4 v[{Q}:{Q+3}], v3, s[16:17] sc1
    global_load_dwordx4 v[{Q+4}:{Q+7}], v3, s[16:17] offset:1024 sc1
    s_mov_b32 s46, {inner2}
L_chk2:
    v_cmp_eq_u64 vcc, s[24:25], v[{Q+2}:{Q+3}]
    v_cmp_eq_u64 s[30:31], s[24:25], v[{Q+6}:{Q+7}]
    s_and_b64 vcc, vcc, s[30:31]
    s_cmp_eq_u64 vcc, exec
    s_cbranch_scc1 L_done2
    s_sub_u32 s46, s46, 1
    s_cbranch_scc0 L_chk2
    s_sub_u32 s44, s44, 1
    s_cbranch_scc0 L_poll2
L_done2:
    ; STAMP 8
{final}
    ; DIAG_SPIN
    s_cmp_lg_u32 s36, 224
    s_cbranch_scc1 L_end
    ; epoch update once every consumer has read the old one
    s_mov_b64 exec, 0xffffffff
    s_mov_b32 exec_hi, 0
L_xall:
    v_cmp_ne_u32 vcc, 0, v18
    s_cmp_eq_u64 vcc, exec
    s_cbranch_scc1 L_xok
    global_load_dword v18, v7, s[14:15] offset:128 sc1
    s_waitcnt vmcnt(0)
    s_sub_u32 s44, s44, 1
    s_cbranch_scc0 L_xall
L_xok:
    v_mov_b32 v6, s24
    v_mov_b32 v7, s25
    v_mov_b32 v5, {EPOCH}
    s_mov_b64 exec, 1
    global_store_dwordx2 v5, v[6:7], s[16:17]
L_end:
{"    s_waitcnt vmcnt(0)" if stamps else ""}
    ; STAMP 9
L_exit:
    s_endpgm
""")
    A('.section .rodata,"a"'); A(".p2align 6"); A(kdesc(N1, NV, 48))
    t=stampify("\n".join(o), stamps)
    if stamps:
        for a,b in (("v150","v250"),("v152","v252"),("v153","v253"),("v155","v255"),("152:153","252:253")):
            pass
    return t

if __name__=="__main__":
    out=sys.argv[1]
    kw={}
    for a in sys.argv[2:]:
        k,v=a.split("=")
        if k in ("stamps","fast","pbar","w0skip","tlbd","fin2","priv","g2","hv","kint"): kw[k]=(v=="1")
        elif k in ("align","inner","slp","inner2","pfsz","slow_sleep","nearly","kb","dclk","first_sleep","split","pre","t0","ne","step","lay","pord"): kw[k]=int(v)
        elif k=="ib": kw[k]=tuple(int(x) for x in v.split(","))
        else: kw[k]=v.replace("_"," ").replace("none","")
    open(out,"w").write(gen(**kw))
```
